```python
import torch

def _softmax(x, axis=-1):
    return torch.softmax(x, dim=axis)
def _gelu(x):
    return torch.nn.functional.gelu(x, approximate="tanh")
def _silu(x):
    return torch.nn.functional.silu(x)
def _sigmoid(x):
    return torch.sigmoid(x)
def _layernorm(x, axis=-1, eps=1e-5):
    m = x.mean(dim=axis, keepdim=True)
    v = x.var(dim=axis, keepdim=True, unbiased=False)
    return (x - m) / torch.sqrt(v + eps)
def _scatter_add(tgt, idx, src, axis=0):
    return tgt.clone().index_add_(axis, idx, src)
def _segment_sum(src, seg, n):
    out = torch.zeros((n,) + src.shape[1:], dtype=src.dtype)
    return out.index_add_(0, seg, src)
def _pad(x, pw):
    flat = tuple(v for pair in reversed(pw) for v in pair)
    return torch.nn.functional.pad(x, flat)

kernel_name = 'sequential_preLN__gqa_block_cached__glu_gated_swiglu__decode'

def setup_inputs():

    _w = (lambda a: (lambda t: t.to(torch.bfloat16) if t.is_floating_point() else t)(torch.as_tensor(a)))
    def _A_setup():
        B, Sq, D = 2, 1, 576
        Hq, Hkv, Sk, Dh = 32, 16, 32768, 128
        assert Hq % Hkv == 0, (Hq, Hkv)
        return {
            "x": _w((lambda *s: torch.randn(*s, dtype=torch.bfloat16) * 0.05)(B, Sq, D)),
            "k_cache": _w((lambda *s: torch.randn(*s, dtype=torch.bfloat16) * 3.2)(B, Hkv, Sk, Dh)),
            "v_cache": _w((lambda *s: torch.randn(*s, dtype=torch.bfloat16) * 1.6)(B, Hkv, Sk, Dh)),
            "wq": _w((lambda *s: torch.randn(*s, dtype=torch.bfloat16) * 3.2)(D, Hq * Dh) * (D ** -0.5)),
            "wo": _w((lambda *s: torch.randn(*s, dtype=torch.bfloat16) * 1.6)(Hq * Dh, D) * ((Hq * Dh) ** -0.5)),
        }
    _A_in = _A_setup()

    def _B_setup():
        B, S, D, F = 2, 1, 576, 4608
        return {
            "x": _w((lambda *s: torch.randn(*s, dtype=torch.bfloat16) * 0.05)(B, S, D)),
            "w1": _w((lambda *s: torch.randn(*s, dtype=torch.bfloat16) * 1.6)(D, F) * (2.0 / D) ** 0.5),
            "w3": _w((lambda *s: torch.randn(*s, dtype=torch.bfloat16) * 1.6)(D, F) * (2.0 / D) ** 0.5),
            "w2": _w((lambda *s: torch.randn(*s, dtype=torch.bfloat16) * 1.6)(F, D) * (2.0 / F) ** 0.5),
        }
    _B_in = _B_setup()

    return {
        "A_x": _A_in["x"],
        "A_k_cache": _A_in["k_cache"],
        "A_v_cache": _A_in["v_cache"],
        "A_wq": _A_in["wq"],
        "A_wo": _A_in["wo"],
        "B_x": _B_in["x"],
        "B_w1": _B_in["w1"],
        "B_w3": _B_in["w3"],
        "B_w2": _B_in["w2"],
    }

def reference(A_x, A_k_cache, A_v_cache, A_wq, A_wo, B_x, B_w1, B_w3, B_w2):
    def _A_ref(x, k_cache, v_cache, wq, wo):
        B, Sq, D = x.shape
        Hq, Dh = 32, 128
        Hkv = k_cache.shape[1]
        rep = Hq // Hkv
        q = (lambda x, *d: x.permute(*d))((x @ wq).reshape(B, Sq, Hq, Dh), 0, 2, 1, 3)
        k = (lambda x, n, axis: torch.repeat_interleave(x, n, dim=axis))(k_cache, rep, axis=1)
        v = (lambda x, n, axis: torch.repeat_interleave(x, n, dim=axis))(v_cache, rep, axis=1)
        scores = torch.einsum("bhqd,bhkd->bhqk", q, k) * (Dh ** -0.5)
        p = _softmax(scores, axis=-1)
        o = torch.einsum("bhqk,bhkd->bhqd", p, v)
        return (lambda x, *d: x.permute(*d))(o, 0, 2, 1, 3).reshape(B, Sq, Hq * Dh) @ wo

    def _B_ref(x, w1, w3, w2):
        gate = torch.einsum("bsd,df->bsf", x, w1)
        up = torch.einsum("bsd,df->bsf", x, w3)
        h = _silu(gate) * up
        out = torch.einsum("bsf,fd->bsd", h, w2)
        return out

    x = A_x
    h = x + _A_ref(_layernorm(x, axis=-1), A_k_cache, A_v_cache, A_wq, A_wo)
    h2 = h + _B_ref(_layernorm(h, axis=-1), B_w1, B_w3, B_w2)
    return h2
```

```python
import re

REG = re.compile(r'\b([vas])\[(\d+):(\d+)\]|\b([vas])(\d+)\b|\b(vcc|exec|m0|scc)\b')
TRANS = ('v_exp_f32', 'v_log_f32', 'v_rcp_f32', 'v_rsq_f32', 'v_sqrt_f32', 'v_sin_f32', 'v_cos_f32')


def regs_of(text):
    out = set()
    for m in REG.finditer(text):
        if m.group(1):
            out |= {(m.group(1), i) for i in range(int(m.group(2)), int(m.group(3)) + 1)}
        elif m.group(4):
            out.add((m.group(4), int(m.group(5))))
        else:
            out.add((m.group(6), 0))
    return out


def split_ops(rest):
    ops, depth, cur = [], 0, ''
    for ch in rest:
        if ch == '[':
            depth += 1
        if ch == ']':
            depth -= 1
        if ch == ',' and depth == 0:
            ops.append(cur.strip())
            cur = ''
        else:
            cur += ch
    if cur.strip():
        ops.append(cur.strip())
    return ops


class Ins:
    def __init__(self, text):
        self.text = text
        t = text.split(';')[0].strip()
        self.label = t.endswith(':')
        self.directive = t.startswith('.')
        self.op = ''
        self.w, self.r = set(), set()
        self.states = 0
        self.kind = ''
        if self.label or self.directive or not t:
            return
        parts = t.split(None, 1)
        self.op = op = parts[0]
        ops = split_ops(parts[1]) if len(parts) > 1 else []
        if ops:
            last = ops[-1].split()
            ops[-1] = last[0] if last else ''
        self.ops = ops
        self.states = int(ops[0]) + 1 if op == 's_nop' else 1
        self.dpp = '_dpp' in op
        R = [regs_of(o) for o in ops]
        allr = set().union(*R) if R else set()
        if op.startswith('v_mfma'):
            self.kind = 'mfma'
            self.w = R[0]
            self.a, self.b, self.c = R[1], R[2], R[3]
            self.r = R[1] | R[2] | R[3]
        elif op.startswith('v_'):
            self.kind = 'valu'
            if op.startswith('v_permlane'):
                self.w = R[0] | R[1]
                self.r = R[0] | R[1]
            else:
                self.w = R[0]
                self.r = set().union(*R[1:]) if len(R) > 1 else set()
                if op.startswith(('v_fmac', 'v_writelane')) or self.dpp:
                    self.r |= R[0]
                if op.startswith('v_cndmask') and len(ops) == 3:
                    self.r.add(('vcc', 0))
            self.dppsrc = R[1] if self.dpp else set()
        elif op.startswith(('buffer_', 'global_')):
            self.kind = 'vmem'
            lds = ' lds' in t
            if 'load' in op and not lds:
                self.w = R[0]
                self.r = set().union(*R[1:])
            elif 'atomic' in op and ' sc0' in t:
                self.w = R[0]
                self.r = allr
            else:
                self.r = allr
            if lds:
                self.r.add(('m0', 0))
            self.lds = lds
            self.wide_store = 'store' in op and op.endswith(('x3', 'x4'))
            self.data = (R[0] if op.startswith('buffer') else R[1]) if self.wide_store else set()
        elif op.startswith('ds_'):
            self.kind = 'ds'
            if op.startswith(('ds_read', 'ds_bpermute', 'ds_swizzle')):
                self.w = R[0]
                self.r = set().union(*R[1:])
            else:
                self.r = allr
        elif op.startswith('s_'):
            self.kind = 'salu'
            if op.startswith(('s_cmp', 's_waitcnt', 's_nop', 's_barrier', 's_branch', 's_cbranch', 's_endpgm', 's_sleep', 's_setprio', 's_bitcmp')):
                self.r = allr
            else:
                self.w = R[0] if R else set()
                self.r = set().union(*R[1:]) if len(R) > 1 else set()


def need(prev, cur):
    n = 0
    pv = {x for x in prev.w if x[0] in 'va' and len(x[0]) == 1}
    ps = {x for x in prev.w if x[0] in ('s', 'vcc')}
    if prev.kind == 'valu':
        if cur.kind == 'valu':
            if cur.dpp and pv & cur.dppsrc:
                n = max(n, 2)
            if cur.op.startswith(('v_readlane', 'v_readfirstlane')) and pv & cur.r:
                n = max(n, 1)
            if cur.op.startswith('v_permlane') and pv & cur.r:
                n = max(n, 2)
            if prev.op.startswith(TRANS) and not cur.op.startswith(TRANS) and pv & (cur.r | cur.w):
                n = max(n, 1)
            if ps & cur.r:
                n = max(n, 4 if cur.op.startswith(('v_readlane', 'v_writelane')) else 2)
        if cur.kind == 'mfma' and pv & cur.r:
            n = max(n, 2)
        if cur.kind == 'vmem' and ps & cur.r:
            n = max(n, 5)
        if cur.kind in ('vmem', 'ds') and prev.op.startswith(TRANS) and pv & cur.r:
            n = max(n, 1)
    if prev.kind == 'mfma':
        if cur.kind == 'mfma':
            if prev.w & (cur.a | cur.b):
                n = max(n, 8)
            if prev.w & cur.c and prev.w != cur.c:
                n = max(n, 6)
            if prev.w & cur.w and not prev.w & cur.c:
                n = max(n, 6)
        elif cur.kind in ('valu', 'vmem', 'ds'):
            if prev.w & (cur.r | cur.w):
                n = max(n, 8)
            if cur.kind == 'valu' and prev.c & cur.w:
                n = max(n, 3)
    if prev.kind == 'salu' and ('m0', 0) in prev.w and cur.kind == 'vmem' and cur.lds:
        n = max(n, 1)
    if prev.kind == 'vmem' and prev.wide_store and cur.kind in ('valu', 'mfma') and prev.data & cur.w:
        n = max(n, 2)
    return n


class Asm:
    def __init__(self):
        self.lines = []

    def __call__(self, *texts):
        for t in texts:
            for ln in t.split('\n'):
                if ln.strip():
                    self.lines.append(ln.strip())

    def label(self, name):
        self.lines.append(name + ':')

    def finish(self):
        ins = [Ins(x) for x in self.lines]
        out = []
        inserted = 0
        for cur in ins:
            if cur.op:
                dist, pad = 0, 0
                for prev in reversed(out):
                    if dist >= 9:
                        break
                    if not prev.op:
                        continue
                    if prev.op in ('s_branch', 's_endpgm'):
                        break
                    pad = max(pad, need(prev, cur) - dist)
                    dist += prev.states
                if pad > 0:
                    out.append(Ins(f's_nop {pad - 1}'))
                    inserted += 1
            out.append(cur)
        labels = {x.text[:-1]: i for i, x in enumerate(out) if x.label}
        problems = []
        for i, x in enumerate(out):
            if x.op.startswith(('s_branch', 's_cbranch')):
                tgt = labels[x.ops[0]]
                back = []
                dist = 1
                for prev in reversed(out[:i]):
                    if dist >= 10:
                        break
                    if prev.op:
                        if prev.op in ('s_branch', 's_endpgm'):
                            break
                        back.append((prev, dist))
                        dist += prev.states
                fd = 0
                for cur in out[tgt:]:
                    if fd >= 9:
                        break
                    if not cur.op:
                        continue
                    for prev, d in back:
                        if need(prev, cur) > d + fd:
                            problems.append((prev.text, x.text, cur.text))
                    if cur.op in ('s_branch', 's_endpgm'):
                        break
                    fd += cur.states
        if problems:
            for p in problems:
                print('HAZARD ACROSS BRANCH:', p)
            raise SystemExit('fix hazards')
        self.inserted = inserted
        return '\n'.join(x.text if (x.label or x.directive) else '    ' + x.text for x in out)
```

```python
import sys, os, struct
sys.path.insert(0, os.path.dirname(os.path.abspath(__file__)))
from emit import Asm

KNAME = "sequential_preLN__gqa_block_cached__glu_gated_swiglu__decode_kernel"

EPOCH, QBUF, OBUF, SBUF, ABUF, FBUF = 0, 4096, 65536, 196608, 204800, 262144
WS_BYTES = 1 << 20
STAMPS = 16 << 20
LW = 0
LW2 = 73728
SCR = 110592
HN, STAT, QRED, MST, HH, RED, CMB = SCR, SCR + 2304, SCR + 2368, SCR + 2880, SCR + 2944, SCR + 3072, SCR + 4608
LDS_BYTES = SCR + 4608 + 4096

def f2u(x):
    return struct.unpack('<I', struct.pack('<f', x))[0]

sW = 's3'
K_SRD, V_SRD, WS_SRD, X_SRD, WA_SRD, W2_SRD, OUT_SRD = 's[4:7]', 's[8:11]', 's[12:15]', 's[16:19]', 's[20:23]', 's[24:27]', 's[28:31]'
sT, sIt, sTag, sRole, sGF, sN, sScale, sL2e = 's32', 's33', 's34', 's35', 's36', 's37', 's38', 's39'
mQ1, mQ2, mQ3 = 's[40:41]', 's[42:43]', 's[44:45]'
sPC = 's[46:47]'
mHi, mPar = 's[72:73]', 's[74:75]'
sSpin = 's50'
sSig, sB, sG, sS = 's51', 's52', 's53', 's54'
vLane = 'v1'
vK0, vK1, vV0, vV1 = 'v2', 'v3', 'v4', 'v5'
SEL = 6
BQ = 10
vM, vL = 'v18', 'v19'
ACC = 20
DQ = 24
SS = 40
PA = 48
vXo = 80
vEv = 'v84'
vOad, vSad = 'v85', 'v86'
vHNo, vHNe, vStW, vStR, vHNa = 'v87', 'v88', 'v89', 'v90', 'v91'
vCmbW, vCmbR, vMstW, vMstR, vMstO = 'v92', 'v93', 'v94', 'v95', 'v96'
vPf = 'v97'
RA = 100
T0 = 128


def vr(a, n=1):
    return f'v{a}' if n == 1 else f'v[{a}:{a + n - 1}]'


def ar(a, n=1):
    return f'a{a}' if n == 1 else f'a[{a}:{a + n - 1}]'


def dpp(ctrl, row=0xf, bank=0xf, bc=False):
    return f'{ctrl} row_mask:{row:#x} bank_mask:{bank:#x}' + (' bound_ctrl:0' if bc else '')


class VM:
    def __init__(self, A):
        self.A, self.q = A, []

    def op(self, text, tag=None):
        self.A(text)
        self.q.append(tag)

    def wait(self, tag):
        last = max(i for i, t in enumerate(self.q) if t == tag)
        n = len(self.q) - 1 - last
        assert n <= 63
        self.A(f's_waitcnt vmcnt({n})')
        self.q = self.q[last + 1:]


class Gen:
    def __init__(self, W=2, L=7, diag=0, spin=8192, pol='nt', wpol='nt', late_pf=13, ev_it=4):
        self.W, self.L, self.diag, self.spin, self.pol, self.wpol = W, L, diag, spin, pol, wpol
        self.late_pf, self.ev_it = late_pf, ev_it
        self.A = Asm()
        self.vm = VM(self.A)
        self.slow = []
        self.nlab = 0

    def lab(self, base):
        self.nlab += 1
        return f'L_{base}{self.nlab}'

    def stamp(self, k):
        if self.diag:
            self.A(f's_memrealtime s[{80 + 2 * k}:{81 + 2 * k}]', 's_waitcnt lgkmcnt(0)')

    def piece(self, n, track=True):
        kind, slot = n & 3, n & 7
        srd = K_SRD if kind < 2 else V_SRD
        va = (vK0, vK1, vV0, vV1)[kind]
        for t in range(4):
            txt = f'buffer_load_dwordx4 {ar(slot * 16 + 4 * t, 4)}, {va}, {srd}, {sT} offen offset:{t * 1024} {self.pol}'
            if track:
                self.vm.op(txt, ('P', n))
            else:
                self.A(txt)
        if kind == 3:
            self.A(f's_add_u32 {sT}, {sT}, 32768')

    def consume(self, n):
        A = self.A
        kind, slot = n & 3, n & 7
        if kind < 2:
            for t in range(4):
                d = DQ + 4 * (2 * kind + t // 2)
                c = '0' if t % 2 == 0 else vr(d, 4)
                A(f'v_mfma_f32_16x16x32_bf16 {vr(d, 4)}, {ar(slot * 16 + 4 * t, 4)}, {vr(BQ + 4 * (t & 1), 4)}, {c}')
            if kind == 1:
                self.softmax()
        else:
            for t in range(4):
                tt = 4 * (kind - 2) + t
                A(f'v_mfma_f32_16x16x32_bf16 {vr(ACC, 4)}, {vr(PA + 4 * tt, 4)}, {ar(slot * 16 + 4 * t, 4)}, {vr(ACC, 4)}')

    def softmax(self):
        A = self.A
        for m in range(4):
            A(f'v_mov_b32_dpp {vr(SS + m)}, {vr(DQ + 4 * m)} ' + dpp('quad_perm:[0,0,0,0]'))
            for b in range(1, 4):
                A(f'v_add_f32_dpp {vr(SS + m)}, {vr(DQ + 4 * m + b)}, {vr(SS + m)} ' + dpp(f'quad_perm:[{b},{b},{b},{b}]'))
        R, P, Tm = 'v44', 'v45', 'v46'
        A(f'v_cndmask_b32 {R}, {vr(SS)}, {vr(SS + 1)}, {mQ1}')
        A(f'v_cndmask_b32 {R}, {R}, {vr(SS + 2)}, {mQ2}')
        A(f'v_cndmask_b32 {R}, {R}, {vr(SS + 3)}, {mQ3}')
        A(f'v_cvt_pk_bf16_f32 {R}, {R}, {R}')
        A(f'v_lshlrev_b32 {R}, 16, {R}')
        A(f'v_mul_f32 {R}, {sScale}, {R}')
        A(f'v_cvt_pk_bf16_f32 {R}, {R}, {R}')
        A(f'v_lshlrev_b32 {R}, 16, {R}')
        slow, back = self.lab('slow'), self.lab('back')
        A(f'v_cmp_gt_f32 vcc, {R}, {vM}')
        A(f's_cbranch_vccnz {slow}')
        A.label(back)
        self.slow.append((slow, back))
        A(f'v_sub_f32 {P}, {R}, {vM}')
        A(f'v_mul_f32 {P}, {sL2e}, {P}')
        A(f'v_exp_f32 {P}, {P}')
        A(f'v_add_f32 {vL}, {vL}, {P}')
        A(f'v_mov_b32_dpp {Tm}, {P} ' + dpp('row_shl:4', bc=True))
        A(f'v_cvt_pk_bf16_f32 {P}, {P}, {Tm}')
        for t in range(8):
            A(f'v_mov_b32_dpp {vr(SS + (t & 3))}, {P} ' + dpp(f'row_newbcast:{8 * (t & 1) + (t >> 1)}'))
            if t % 4 == 3:
                for tt in range(t - 3, t + 1):
                    for d in range(4):
                        b = vr(SS + (tt & 3))
                        A(f'v_perm_b32 {vr(PA + 4 * tt + d)}, {b}, {b}, {vr(SEL + d)}')

    def slow_paths(self):
        A = self.A
        R, t, t2, f = 'v44', 'v45', 'v46', 'v47'
        for slow, back in self.slow:
            A.label(slow)
            A(f'v_max_f32_dpp {t}, {R}, {R} ' + dpp('quad_perm:[1,0,3,2]'))
            A(f'v_max_f32_dpp {t}, {t}, {t} ' + dpp('quad_perm:[2,3,0,1]'))
            A(f'v_max_f32_dpp {t}, {t}, {t} ' + dpp('row_ror:8'))
            A(f'v_mov_b32 {t2}, {t}', f'v_permlane16_swap_b32 {t}, {t2}', f'v_max_f32 {t}, {t}, {t2}')
            A(f'v_mov_b32 {t2}, {t}', f'v_permlane32_swap_b32 {t}, {t2}', f'v_max3_f32 {t}, {t}, {t2}, {vM}')
            A(f'v_sub_f32 {f}, {vM}, {t}', f'v_mul_f32 {f}, {sL2e}, {f}', f'v_exp_f32 {f}, {f}')
            A(f'v_mov_b32 {vM}, {t}', f'v_mul_f32 {vL}, {vL}, {f}')
            A(f'v_readlane_b32 s48, {f}, 0', f'v_readlane_b32 s49, {f}, 4')
            A(f'v_mov_b32 {t}, s48', f'v_mov_b32 {t2}, s49', f'v_cndmask_b32 {t}, {t}, {t2}, {mHi}')
            for r in range(4):
                A(f'v_mul_f32 {vr(ACC + r)}, {vr(ACC + r)}, {t}')
            A('s_nop 1', f's_branch {back}')

    def layernorm(self, h, tmp):
        A = self.A
        d, s1, s2, hx = tmp, tmp + 6, tmp + 7, tmp + 5
        A(f'v_readfirstlane_b32 s48, {vr(h)}')
        for k in range(5):
            A(f'v_subrev_f32 {vr(d + k)}, s48, {vr(h + k)}')
        A(f'v_mul_f32 {vr(hx)}, 0.5, {vr(d + 4)}')
        A(f'v_add_f32 {vr(s1)}, {vr(d)}, {vr(d + 1)}', f'v_mul_f32 {vr(s2)}, {vr(d)}, {vr(d)}')
        A(f'v_add_f32 {vr(s1)}, {vr(s1)}, {vr(d + 2)}', f'v_fmac_f32 {vr(s2)}, {vr(d + 1)}, {vr(d + 1)}')
        A(f'v_add_f32 {vr(s1)}, {vr(s1)}, {vr(d + 3)}', f'v_fmac_f32 {vr(s2)}, {vr(d + 2)}, {vr(d + 2)}')
        A(f'v_add_f32 {vr(s1)}, {vr(s1)}, {vr(hx)}', f'v_fmac_f32 {vr(s2)}, {vr(d + 3)}, {vr(d + 3)}')
        A(f'v_mov_b32 {vr(tmp + 8)}, s48', f'v_fmac_f32 {vr(s2)}, {vr(hx)}, {vr(d + 4)}')
        for c, row in (('quad_perm:[1,0,3,2]', 0xf), ('quad_perm:[2,3,0,1]', 0xf), ('row_half_mirror', 0xf), ('row_mirror', 0xf),
                       ('row_bcast:15', 0xa), ('row_bcast:31', 0xc)):
            for s in (s1, s2):
                A(f'v_add_f32_dpp {vr(s)}, {vr(s)}, {vr(s)} ' + dpp(c, row=row))
        A('s_mov_b32 exec_lo, 0', 's_mov_b32 exec_hi, 0x80000000')
        A(f'ds_write_b96 {vStW}, {vr(s1, 3)}')
        A('s_mov_b64 exec, -1', 's_waitcnt lgkmcnt(0)', 's_barrier')
        a, b = tmp + 10, tmp + 14
        A(f'ds_read_b96 {vr(a, 3)}, {vStR}', f'ds_read_b96 {vr(b, 3)}, {vStR} offset:16')
        A(f's_mov_b32 s48, {f2u(1 / 288):#x}', f's_mov_b32 s49, {f2u(144.0):#x}', 's_waitcnt lgkmcnt(0)')
        ta, tb = tmp, tmp + 1
        A(f'v_mul_f32 {vr(ta)}, s48, {vr(a)}', f'v_mul_f32 {vr(tb)}, s48, {vr(b)}')
        A(f'v_fma_f32 {vr(a + 1)}, -{vr(ta)}, {vr(a)}, {vr(a + 1)}', f'v_fma_f32 {vr(b + 1)}, -{vr(tb)}, {vr(b)}, {vr(b + 1)}')
        A(f'v_add_f32 {vr(ta)}, {vr(ta)}, {vr(a + 2)}', f'v_add_f32 {vr(tb)}, {vr(tb)}, {vr(b + 2)}')
        A(f'v_add_f32 {vr(a + 1)}, {vr(a + 1)}, {vr(b + 1)}', f'v_sub_f32 {vr(a)}, {vr(ta)}, {vr(tb)}')
        A(f'v_add_f32 {vr(ta)}, {vr(ta)}, {vr(tb)}', f'v_mul_f32 {vr(b)}, s49, {vr(a)}')
        A(f'v_mul_f32 {vr(ta)}, 0.5, {vr(ta)}', f'v_fmac_f32 {vr(a + 1)}, {vr(b)}, {vr(a)}')
        A(f's_mov_b32 s48, {f2u(1 / 576):#x}', f's_mov_b32 s49, {f2u(1e-5):#x}')
        A(f'v_mul_f32 {vr(a + 1)}, s48, {vr(a + 1)}', f'v_max_f32 {vr(a + 1)}, 0, {vr(a + 1)}')
        A(f'v_cvt_pk_bf16_f32 {vr(ta)}, {vr(ta)}, {vr(a + 1)}')
        mu, den = tmp + 6, tmp + 7
        A(f'v_and_b32 {vr(den)}, 0xffff0000, {vr(ta)}', f'v_lshlrev_b32 {vr(mu)}, 16, {vr(ta)}')
        A(f'v_add_f32 {vr(den)}, s49, {vr(den)}')
        for k in range(5):
            A(f'v_sub_f32 {vr(d + k)}, {vr(h + k)}, {vr(mu)}')
            if k == 0:
                A(f'v_cvt_pk_bf16_f32 {vr(den)}, {vr(den)}, {vr(den)}')
            if k == 1:
                A(f'v_lshlrev_b32 {vr(den)}, 16, {vr(den)}')
            if k == 2:
                A(f'v_sqrt_f32 {vr(den)}, {vr(den)}')
        A(f'v_cvt_pk_bf16_f32 {vr(den)}, {vr(den)}, {vr(den)}')
        A(f'v_cvt_pk_bf16_f32 {vr(d + 1)}, {vr(d)}, {vr(d + 1)}')
        A(f'v_lshlrev_b32 {vr(den)}, 16, {vr(den)}')
        A(f'v_cvt_pk_bf16_f32 {vr(d + 3)}, {vr(d + 2)}, {vr(d + 3)}')
        A(f'v_rcp_f32 {vr(den)}, {vr(den)}')
        A(f'v_cvt_pk_bf16_f32 {vr(d + 4)}, {vr(d + 4)}, {vr(d + 4)}')
        A(f'v_lshlrev_b32 {vr(d)}, 16, {vr(d + 1)}', f'v_and_b32 {vr(d + 1)}, 0xffff0000, {vr(d + 1)}')
        A(f'v_lshlrev_b32 {vr(d + 2)}, 16, {vr(d + 3)}', f'v_and_b32 {vr(d + 3)}, 0xffff0000, {vr(d + 3)}')
        A(f'v_lshlrev_b32 {vr(d + 4)}, 16, {vr(d + 4)}')
        for k in range(5):
            A(f'v_mul_f32 {vr(d + k)}, {vr(d + k)}, {vr(den)}')
        o = tmp + 10
        A(f'v_cvt_pk_bf16_f32 {vr(o)}, {vr(d)}, {vr(d + 1)}', f'v_cvt_pk_bf16_f32 {vr(o + 1)}, {vr(d + 2)}, {vr(d + 3)}')
        A(f'v_cvt_pk_bf16_f32 {vr(o + 2)}, {vr(d + 4)}, {vr(d + 4)}')
        A(f'ds_write_b64 {vHNo}, {vr(o, 2)}', f'ds_write_b16 {vHNe}, {vr(o + 2)}')
        A('s_waitcnt lgkmcnt(0)', 's_barrier')

    def spin_end(self, retry, ok):
        A = self.A
        A(f's_cbranch_vccz {ok}', f's_sub_u32 {sSpin}, {sSpin}, 1', f's_cbranch_scc0 {retry}')

    def head(self):
        A, vm = self.A, self.vm
        A('s_cmp_ge_u32 s2, 256', 's_cbranch_scc1 L_end')
        A('s_load_dwordx2 s[16:17], s[0:1], 0', 's_load_dwordx2 s[20:21], s[0:1], 24', 's_load_dwordx2 s[12:13], s[0:1], 88')
        A('s_load_dwordx2 s[4:5], s[0:1], 8', 's_load_dwordx2 s[8:9], s[0:1], 16')
        A(f's_getpc_b64 {sPC}')
        A.label('L_pc')
        A(f's_sub_u32 s46, s46, L_pc-{KNAME}', 's_subb_u32 s47, s47, 0')
        A(f'v_lshlrev_b32 {vPf}, 7, v0', f'v_min_u32 {vPf}, L_codeend-{KNAME}-4, {vPf}')
        vm.op(f'global_load_dword v255, {vPf}, {sPC}')
        A('s_load_dwordx2 s[64:65], s[0:1], 32', 's_load_dwordx4 s[68:71], s[0:1], 48')
        A('s_load_dwordx2 s[24:25], s[0:1], 64', 's_load_dwordx2 s[28:29], s[0:1], 72')
        self.stamp(0)
        A(f'v_lshrrev_b32 v2, 6, v0', f'v_and_b32 {vLane}, 63, v0', f'v_readfirstlane_b32 {sW}, v2')
        for base, size in ((6, 0x10000000), (10, 0x10000000), (14, WS_BYTES), (18, 2304), (22, 576 * 8192), (26, 4608 * 1152), (30, 2304)):
            A(f's_mov_b32 s{base}, {size:#x}', f's_mov_b32 s{base + 1}, 0x20000')
        A(f's_and_b32 {sS}, s2, 7', 's_lshr_b32 s55, s2, 3', f's_and_b32 {sB}, s55, 1', f's_lshr_b32 {sG}, s55, 1')
        A(f's_lshl_b32 {sSig}, {sS}, 5', f's_add_u32 {sSig}, {sSig}, s55')
        A(f's_lshr_b32 s58, {sW}, 1', 's_mul_i32 s56, s58, 1152', f's_and_b32 s59, {sW}, 1')
        A('s_lshl_b32 s57, s59, 6', 's_add_u32 s57, s57, s56', 's_add_u32 s57, s57, 1024')
        A('s_lshl_b32 s59, s59, 9', 's_add_u32 s56, s56, s59')
        t = T0
        A(f'v_lshlrev_b32 {vr(t)}, 3, {vLane}', f'v_and_b32 {vr(t + 1)}, 31, {vLane}', f'v_lshlrev_b32 {vr(t + 1)}, 1, {vr(t + 1)}')
        A(f'v_lshrrev_b32 {vr(t + 2)}, 1, {vLane}', f'v_lshlrev_b32 {vr(t + 2)}, 13, {vr(t + 2)}')
        A(f'v_and_b32 {vr(t + 3)}, 1, {vLane}', f'v_lshl_or_b32 {vr(t + 2)}, {vr(t + 3)}, 4, {vr(t + 2)}')
        A(f'v_mov_b32 {vr(t + 3)}, 0')
        A(f's_lshl_b32 s60, {sS}, 2', 's_add_u32 s60, s60, s55', 's_and_b32 s60, s60, 31')
        lr = self.lab('role')
        A(f's_mov_b32 {sRole}, 0', f's_mov_b32 {sN}, s60', f's_mov_b32 {sGF}, {sS}', 's_cmp_lt_u32 s60, 12', f's_cbranch_scc1 {lr}')
        A(f's_mov_b32 {sRole}, 1', f's_mul_i32 {sGF}, {sS}, 18', f's_add_u32 {sGF}, {sGF}, s60', f's_sub_u32 {sGF}, {sGF}, 12')
        A('s_cmp_lt_u32 s60, 30', f's_cbranch_scc1 {lr}', f's_mov_b32 {sRole}, 2')
        A.label(lr)
        A(f's_lshl_b32 s60, {sG}, 1', f's_add_u32 s60, s60, {sW}', f's_lshl_b32 s61, {sB}, 3', f's_add_u32 s61, s61, {sS}')
        A('s_lshl_b32 s62, s60, 12', 's_lshl_b32 s63, s61, 8', 's_add_u32 s62, s62, s63', f's_add_u32 s62, s62, {OBUF}')
        A(f'v_lshl_add_u32 {vOad}, {vLane}, 2, s62')
        A('s_lshl_b32 s62, s60, 7', 's_lshl_b32 s63, s61, 3', 's_add_u32 s62, s62, s63', f's_add_u32 s62, s62, {SBUF}')
        A(f'v_mov_b32 {vSad}, s62')
        for k in range(4):
            A(f'v_mov_b32 {vr(t + 4 + k)}, -1')
        A(f'v_bfe_u32 {vK0}, {vLane}, 2, 2', f'v_lshlrev_b32 {vK0}, 8, {vK0}', f'v_lshrrev_b32 {vK1}, 4, {vLane}')
        A(f'v_lshl_or_b32 {vK0}, {vK1}, 6, {vK0}', f'v_and_b32 {vK1}, 3, {vLane}', f'v_lshl_or_b32 {vK0}, {vK1}, 4, {vK0}')
        A(f'v_add_u32 {vK1}, 4096, {vK0}', f'v_lshlrev_b32 {vV0}, 4, {vLane}', f'v_add_u32 {vV1}, 4096, {vV0}')
        A(f's_lshl_b32 {sT}, {sB}, 4', f's_add_u32 {sT}, {sT}, {sG}', f's_lshl_b32 {sT}, {sT}, 23')
        A(f's_lshl_b32 s60, {sS}, 20', f's_add_u32 {sT}, {sT}, s60', f's_lshl_b32 s60, {sW}, 13', f's_add_u32 {sT}, {sT}, s60')
        A(f's_lshl_b32 s62, {sSig}, 5', f's_lshl_b32 s60, {sW}, 18', 's_add_u32 s62, s62, s60', f's_lshl_b32 s63, {sW}, 10')
        A('s_waitcnt lgkmcnt(0)')
        vm.op(f'buffer_load_dwordx2 {vr(vXo, 2)}, {vr(t)}, {X_SRD}, s56 offen', 'x')
        vm.op(f'buffer_load_ushort {vr(vXo + 2)}, {vr(t + 1)}, {X_SRD}, s57 offen', 'x')
        vm.op(f'buffer_load_dword {vr(t + 8)}, {vr(t + 3)}, {WS_SRD}, 0 offen sc1', 'ep')
        l1, l2, l3 = self.lab('pf'), self.lab('pf'), self.lab('pf')
        A(f's_cmp_lt_u32 {sW}, 2', f's_cbranch_scc0 {l1}')
        A(f'buffer_store_dword {vr(t + 4)}, {vOad}, {WS_SRD}, 0 offen sc1')
        A(f'buffer_store_dwordx2 {vr(t + 4, 2)}, {vSad}, {WS_SRD}, 0 offen sc1')
        A(f's_cmp_eq_u32 {sRole}, 0', f's_cbranch_scc0 {l1}')
        A(f's_mul_i32 s60, {sGF}, 4608', f's_mul_i32 s61, {sW}, 2304', 's_add_u32 s60, s60, s61', f's_mul_i32 s61, {sN}, 192')
        A('s_add_u32 s60, s60, s61', f's_add_u32 s60, s60, {ABUF}', f'v_lshlrev_b32 {vr(t + 9)}, 2, {vLane}')
        A('s_mov_b32 exec_hi, 0xffff')
        A(f'buffer_store_dword {vr(t + 4)}, {vr(t + 9)}, {WS_SRD}, s60 offen sc1')
        A('s_mov_b64 exec, -1')
        A.label(l1)
        A(f's_cmp_eq_u32 {sRole}, 1', f's_cbranch_scc0 {l2}')
        A(f's_mul_i32 s60, {sGF}, 4608', f's_add_u32 s60, s60, {FBUF}', f'v_lshlrev_b32 {vr(t + 9)}, 4, v0')
        A(f'buffer_store_dwordx4 {vr(t + 4, 4)}, {vr(t + 9)}, {WS_SRD}, s60 offen sc1')
        A(f's_cmp_eq_u32 {sW}, 0', f's_cbranch_scc0 {l2}', 's_add_u32 s60, s60, 4096', 's_mov_b32 exec_hi, 0')
        A(f'buffer_store_dwordx4 {vr(t + 4, 4)}, {vr(t + 9)}, {WS_SRD}, s60 offen sc1')
        A('s_mov_b64 exec, -1')
        A.label(l2)
        for j in range(4):
            A('s_mov_b32 m0, s63')
            vm.op(f'buffer_load_dwordx4 {vr(t + 2)}, {WA_SRD}, s62 offen {self.wpol} lds', 'wq')
            A('s_add_u32 s62, s62, 0x100000', 's_add_u32 s63, s63, 4096')
        A(f's_cmp_lt_u32 {sW}, 2', f's_cbranch_scc0 {l3}', 's_mov_b32 m0, s63')
        A(f'buffer_load_dwordx4 {vr(t + 2)}, {WA_SRD}, s62 offen {self.wpol} lds')
        A.label(l3)
        for n in range(3):
            self.piece(n)
        self.setup_consts()
        self.setup_roles()
        vm.wait('x')
        h = T0 + 16
        A(f'v_lshlrev_b32 {vr(h)}, 16, {vr(vXo)}', f'v_and_b32 {vr(h + 1)}, 0xffff0000, {vr(vXo)}')
        A(f'v_lshlrev_b32 {vr(h + 2)}, 16, {vr(vXo + 1)}', f'v_and_b32 {vr(h + 3)}, 0xffff0000, {vr(vXo + 1)}')
        A(f'v_lshlrev_b32 {vr(h + 4)}, 16, {vr(vXo + 2)}')
        self.layernorm(h, T0 + 24)
        a0, b0, d0 = T0 + 48, T0 + 68, T0 + 88
        for j in range(5):
            A(f'ds_read_b128 {vr(a0 + 4 * j, 4)}, {vr(T0 + 10)} offset:{j * 256}')
        vm.wait('wq')
        A(f'v_readfirstlane_b32 {sTag}, {vr(t + 8)}')
        for j in range(5):
            for u in range(2):
                A(f'ds_read_b64_tr_b16 {vr(b0 + 4 * j + 2 * u, 2)}, {vr(T0 + 11)} offset:{j * 4096 + u * 128}')
        A(f's_mul_i32 {sTag}, {sTag}, 0x9E3779B1', f's_add_u32 {sTag}, {sTag}, 0x7F4A7C15')
        A('s_waitcnt lgkmcnt(0)')
        for j in range(4):
            A(f'v_mfma_f32_16x16x32_bf16 {vr(d0, 4)}, {vr(a0 + 4 * j, 4)}, {vr(b0 + 4 * j, 4)}, ' + ('0' if j == 0 else vr(d0, 4)))
        l4 = self.lab('q')
        A(f's_cmp_lt_u32 {sW}, 2', f's_cbranch_scc0 {l4}')
        A(f'v_mfma_f32_16x16x32_bf16 {vr(d0, 4)}, {vr(a0 + 16, 4)}, {vr(b0 + 16, 4)}, {vr(d0, 4)}')
        A.label(l4)
        A('s_nop 7', 's_mov_b64 exec, 0xffff')
        A(f'ds_write2_b32 {vr(T0 + 12)}, {vr(d0)}, {vr(d0 + 1)} offset0:0 offset1:16')
        A('s_mov_b64 exec, -1', 's_waitcnt lgkmcnt(0)', 's_barrier')
        l5 = self.lab('q')
        A(f's_cmp_eq_u32 {sW}, 0', f's_cbranch_scc0 {l5}')
        A(f'ds_read2_b32 {vr(a0, 2)}, {vr(T0 + 13)} offset0:0 offset1:32', f'ds_read2_b32 {vr(a0 + 2, 2)}, {vr(T0 + 13)} offset0:64 offset1:96')
        A('s_waitcnt lgkmcnt(0)')
        A(f'v_add_f32 {vr(a0)}, {vr(a0)}, {vr(a0 + 1)}', f'v_add_f32 {vr(a0 + 2)}, {vr(a0 + 2)}, {vr(a0 + 3)}', f'v_add_f32 {vr(a0)}, {vr(a0)}, {vr(a0 + 2)}')
        A(f'v_mov_b32 {vr(a0 + 3)}, {sTag}')
        A(f'v_mov_b32_dpp {vr(a0 + 1)}, {vr(a0)} ' + dpp('quad_perm:[1,1,3,3]'))
        A(f'v_cvt_pk_bf16_f32 {vr(a0 + 2)}, {vr(a0)}, {vr(a0 + 1)}')
        A('s_mov_b32 exec_lo, 0x55555555', 's_mov_b32 exec_hi, 0')
        A(f'buffer_store_dwordx2 {vr(a0 + 2, 2)}, {vr(T0 + 14)}, {WS_SRD}, 0 offen sc1')
        A('s_mov_b64 exec, -1')
        A.label(l5)
        self.stamp(1)
        self.piece(3)
        self.piece(4)
        qp = T0 + 48

        def qload(track):
            for k in range(2):
                txt = f'buffer_load_dwordx4 {vr(qp + 4 * k, 4)}, {vr(T0 + 15)}, {WS_SRD}, 0 offen offset:{16 * k} sc1'
                vm.op(txt, 'q') if track else A(txt)
        qload(True)
        self.piece(5)
        self.piece(6)
        A(f's_mov_b32 {sSpin}, {self.spin}')
        vm.wait('q')
        chk, ok, retry = self.lab('qchk'), self.lab('qok'), self.lab('qretry')
        A.label(chk)
        A(f'v_xor_b32 {vr(qp + 8)}, {sTag}, {vr(qp + 1)}', f'v_xor_b32 {vr(qp + 9)}, {sTag}, {vr(qp + 3)}')
        A(f'v_xor_b32 {vr(qp + 10)}, {sTag}, {vr(qp + 5)}', f'v_xor_b32 {vr(qp + 11)}, {sTag}, {vr(qp + 7)}')
        A(f'v_or3_b32 {vr(qp + 8)}, {vr(qp + 8)}, {vr(qp + 9)}, {vr(qp + 10)}', f'v_or_b32 {vr(qp + 8)}, {vr(qp + 8)}, {vr(qp + 11)}')
        A(f'v_cmp_ne_u32 vcc, 0, {vr(qp + 8)}')
        A(f's_cbranch_vccz {ok}', f's_sub_u32 {sSpin}, {sSpin}, 1', f's_cbranch_scc1 {ok}')
        qload(False)
        A('s_waitcnt vmcnt(0)', f's_branch {chk}')
        A.label(ok)
        for k in range(4):
            A(f'v_cndmask_b32 {vr(BQ + k)}, {vr(qp + 2 * k)}, 0, {mPar}', f'v_cndmask_b32 {vr(BQ + 4 + k)}, 0, {vr(qp + 2 * k)}, {mPar}')
        self.stamp(2)

    def setup_consts(self):
        A = self.A
        t = T0 + 4
        A(f's_mov_b32 {sScale}, {f2u(128 ** -0.5):#x}', f's_mov_b32 {sL2e}, {f2u(1.4426950408889634):#x}')
        for m, v in ((40, 0x22222222), (42, 0x44444444), (44, 0x88888888), (74, 0xff00ff00)):
            A(f's_mov_b32 s{m}, {v:#x}', f's_mov_b32 s{m + 1}, {v:#x}')
        A('s_mov_b32 s72, 0', 's_mov_b32 s73, -1')
        A(f'v_mov_b32 {vM}, 0xff800000', f'v_mov_b32 {vL}, 0')
        for r in range(4):
            A(f'v_mov_b32 {vr(ACC + r)}, 0')
        A(f'v_bfe_u32 {vr(t)}, {vLane}, 3, 1', f'v_mul_u32_u24 {vr(t)}, 0x202, {vr(t)}', f'v_add_u32 {vr(t)}, 0x100, {vr(t)}')
        A(f'v_or_b32 {vr(t + 1)}, 0x0c0c0000, {vr(t)}', f'v_lshlrev_b32 {vr(t)}, 16, {vr(t)}', f'v_or_b32 {vr(t)}, 0x0c0c, {vr(t)}')
        A(f'v_and_b32 {vr(t + 2)}, 1, {vLane}', f'v_cmp_eq_u32 vcc, 1, {vr(t + 2)}', f'v_cndmask_b32 {vr(t)}, {vr(t + 1)}, {vr(t)}, vcc')
        A(f'v_bfe_u32 {vr(t + 1)}, {vLane}, 1, 2', f'v_mov_b32 {vr(t + 2)}, 0x0c0c0c0c')
        for d in range(4):
            A(f'v_cmp_eq_u32 vcc, {d}, {vr(t + 1)}', f'v_cndmask_b32 {vr(SEL + d)}, {vr(t + 2)}, {vr(t)}, vcc')
        g, r, c, j = t + 4, t + 5, t + 6, t + 7
        g, r, c, j = 250, 251, 252, 253
        A(f'v_lshrrev_b32 {vr(g)}, 4, {vLane}', f'v_bfe_u32 {vr(r)}, {vLane}, 2, 2', f'v_and_b32 {vr(c)}, 3, {vLane}', f'v_and_b32 {vr(j)}, 15, {vLane}')
        A(f's_add_u32 s60, s56, {HN}', f'v_lshl_add_u32 {vHNo}, {vLane}, 3, s60')
        A(f'v_and_b32 {vr(t)}, 31, {vLane}', f's_add_u32 s60, s57, {HN}', f'v_lshl_add_u32 {vHNe}, {vr(t)}, 1, s60')
        A(f's_lshl_b32 s60, {sW}, 4', f's_add_u32 s60, s60, {STAT}', f'v_mov_b32 {vStW}, s60')
        A(f's_lshr_b32 s60, {sW}, 1', 's_lshl_b32 s60, s60, 5', f's_add_u32 s60, s60, {STAT}', f'v_mov_b32 {vStR}, s60')
        A(f'v_and_b32 {vr(t)}, 1, {vLane}', f'v_mul_u32_u24 {vr(t)}, 1152, {vr(t)}', f'v_lshl_add_u32 {vr(t)}, {vr(g)}, 4, {vr(t)}')
        A(f'v_add_u32 {vHNa}, {HN}, {vr(t)}')
        A(f's_lshl_b32 s60, {sW}, 6', f'v_add_u32 {vr(T0 + 10)}, s60, {vHNa}')
        A(f'v_lshl_add_u32 {vr(t)}, {vr(g)}, 3, {vr(r)}', f'v_lshlrev_b32 {vr(t)}, 5, {vr(t)}', f'v_lshl_add_u32 {vr(t)}, {vr(c)}, 3, {vr(t)}')
        A(f's_lshl_b32 s60, {sW}, 10', f'v_add_u32 {vr(T0 + 11)}, s60, {vr(t)}')
        A(f's_lshl_b32 s60, {sW}, 7', f's_add_u32 s60, s60, {QRED}', f'v_lshl_add_u32 {vr(T0 + 12)}, {vLane}, 2, s60')
        A(f'v_lshlrev_b32 {vr(t)}, 2, {vLane}', f'v_add_u32 {vr(T0 + 13)}, {QRED}, {vr(t)}')
        A(f'v_and_b32 {vr(t)}, 1, {vr(g)}', f'v_lshlrev_b32 {vr(t)}, 14, {vr(t)}', f'v_lshl_add_u32 {vr(t)}, {vr(j)}, 2, {vr(t)}')
        A(f's_lshl_b32 s60, {sSig}, 6', f's_add_u32 s60, s60, {QBUF}', f'v_add_u32 {vr(T0 + 14)}, s60, {vr(t)}')
        A(f'v_and_b32 {vr(t)}, 1, {vr(r)}', f'v_lshlrev_b32 {vr(t)}, 9, {vr(t)}', f'v_lshl_add_u32 {vr(t)}, {vr(g)}, 7, {vr(t)}')
        A(f'v_lshl_add_u32 {vr(t)}, {vr(c)}, 5, {vr(t)}')
        A(f's_lshl_b32 s60, {sB}, 14', f's_lshl_b32 s61, {sG}, 10', 's_add_u32 s60, s60, s61', f's_add_u32 s60, s60, {QBUF}')
        A(f'v_add_u32 {vr(T0 + 15)}, s60, {vr(t)}')
        A(f'v_lshlrev_b32 {vEv}, 6, v0', f'v_add_u32 {vEv}, {QBUF + 4}, {vEv}')
        A(f'v_lshrrev_b32 {vr(t)}, 1, {vr(g)}', f'v_lshlrev_b32 {vr(t + 1)}, 9, {vr(t)}', f'v_lshl_add_u32 {vr(t + 1)}, {vr(j)}, 5, {vr(t + 1)}')
        A(f'v_and_b32 {vr(t + 2)}, 1, {vr(g)}', f'v_lshl_add_u32 {vr(t + 1)}, {vr(t + 2)}, 4, {vr(t + 1)}')
        A(f's_lshl_b32 s60, {sW}, 10', f's_add_u32 s60, s60, {CMB}', f'v_add_u32 {vCmbW}, s60, {vr(t + 1)}')
        A(f'v_lshlrev_b32 {vr(t)}, 3, {vr(t)}', f'v_add_u32 {vMstR}, {MST}, {vr(t)}')
        A(f's_lshl_b32 s60, {sW}, 4', f'v_add_u32 {vMstO}, s60, {vMstR}')
        A(f'v_bfe_u32 {vr(t)}, {vLane}, 2, 1', f'v_lshlrev_b32 {vr(t)}, 3, {vr(t)}', f's_add_u32 s60, s60, {MST}', f'v_add_u32 {vMstW}, s60, {vr(t)}')
        A(f'v_lshlrev_b32 {vr(t)}, 7, {vr(g)}', f'v_bfe_u32 {vr(t + 1)}, {vLane}, 1, 1', f'v_lshl_add_u32 {vr(t)}, {vr(t + 1)}, 6, {vr(t)}')
        A(f'v_lshl_add_u32 {vr(t)}, {vr(r)}, 4, {vr(t)}', f'v_and_b32 {vr(t + 1)}, 1, {vLane}', f'v_lshl_add_u32 {vr(t)}, {vr(t + 1)}, 3, {vr(t)}')
        A(f's_lshl_b32 s60, {sW}, 9', f's_add_u32 s60, s60, {CMB}', f'v_add_u32 {vCmbR}, s60, {vr(t)}')
        self.fields = (g, r, c, j)

    def setup_roles(self):
        A = self.A
        g, r, c, j = self.fields
        t = T0 + 4
        lf, le = self.lab('rf'), self.lab('re')
        A(f's_cmp_eq_u32 {sRole}, 0', f's_cbranch_scc0 {lf}')
        for i in range(3):
            A(f'v_add_u32 {vr(t)}, {64 * i}, {vLane}', f'v_mul_u32_u24 {vr(t + 1)}, 171, {vr(t)}', f'v_lshrrev_b32 {vr(t + 1)}, 10, {vr(t + 1)}')
            A(f'v_mul_u32_u24 {vr(t + 2)}, 1056, {vr(t + 1)}', f'v_lshl_add_u32 {vr(RA + i)}, {vr(t)}, 4, {vr(t + 2)}')
        A(f'v_lshl_add_u32 {vr(t)}, {vr(g)}, 2, {vr(r)}', f'v_mul_u32_u24 {vr(t)}, 96, {vr(t)}', f'v_lshl_add_u32 {vr(t)}, {vr(c)}, 3, {vr(t)}')
        A(f's_mul_i32 s60, {sW}, 12288', f'v_add_u32 {vr(RA + 3)}, s60, {vr(t)}')
        A(f's_lshl_b32 s61, {sGF}, 2', f's_add_u32 s61, s61, {sW}')
        A(f'v_lshlrev_b32 {vr(t)}, 8, {vr(j)}', f'v_lshl_add_u32 {vr(t)}, {vr(g)}, 4, {vr(t)}')
        A('s_lshl_b32 s60, s61, 12', f's_add_u32 s60, s60, {OBUF}', f'v_add_u32 {vr(RA + 4)}, s60, {vr(t)}')
        A(f'v_lshl_add_u32 {vr(t)}, {vr(g)}, 2, {vr(j)}', f'v_and_b32 {vr(t)}, 7, {vr(t)}', f'v_lshrrev_b32 {vr(t + 1)}, 1, {vr(g)}')
        A(f'v_lshl_add_u32 {vr(t)}, {vr(t + 1)}, 3, {vr(t)}', 's_lshl_b32 s60, s61, 7', f's_add_u32 s60, s60, {SBUF}', f'v_lshl_add_u32 {vr(RA + 5)}, {vr(t)}, 3, s60')
        A(f'v_mul_u32_u24 {vr(t)}, 192, {vr(t + 1)}', f'v_lshl_add_u32 {vr(t)}, {vr(j)}, 2, {vr(t)}')
        A(f's_mul_i32 s60, {sW}, 384', f's_add_u32 s60, s60, {RED}', f'v_add_u32 {vr(t)}, s60, {vr(t)}', f'v_add_u32 {vr(RA + 7)}, 128, {vr(t)}')
        A(f'v_and_b32 {vr(t + 1)}, 1, {vr(g)}', f'v_lshl_add_u32 {vr(RA + 6)}, {vr(t + 1)}, 6, {vr(t)}')
        A(f's_mul_i32 s60, {sW}, 192', f's_add_u32 s60, s60, {RED}', f'v_lshl_add_u32 {vr(RA + 8)}, {vLane}, 2, s60')
        A(f's_mul_i32 s60, {sGF}, 4608', f's_mul_i32 s62, {sW}, 2304', 's_add_u32 s60, s60, s62', f's_mul_i32 s62, {sN}, 192')
        A('s_add_u32 s60, s60, s62', f's_add_u32 s60, s60, {ABUF}', f'v_lshl_add_u32 {vr(RA + 9)}, {vLane}, 2, s60')
        A(f's_mul_i32 s60, {sN}, 48', f's_lshr_b32 s62, {sGF}, 1', 's_mul_i32 s62, s62, 12', 's_add_u32 s60, s60, s62')
        A(f's_lshl_b32 s62, {sW}, 2', 's_add_u32 s60, s60, s62', f's_and_b32 s62, {sGF}, 1', 's_mul_i32 s62, s62, 576', 's_add_u32 s76, s60, s62')
        A(f'v_and_b32 {vr(t)}, 7, {vLane}', f'v_mul_u32_u24 {vr(t)}, 4608, {vr(t)}', 's_lshl_b32 s60, s76, 2', f's_add_u32 s62, s60, {ABUF}', f'v_add_u32 {vr(RA + 10)}, s62, {vr(t)}')
        A(f'v_mul_u32_u24 {vr(t)}, 4608, {vLane}', f's_add_u32 s62, s60, {FBUF}', f'v_add_u32 {vr(RA + 11)}, s62, {vr(t)}')
        A('s_lshl_b32 s60, s76, 1', f'v_mov_b32 {vr(RA + 12)}, s60')
        A(f's_mul_i32 s77, s61, {128 * 1152}', f's_mul_i32 s60, {sN}, 96', 's_add_u32 s77, s77, s60')
        A(f's_mul_i32 s78, {sW}, 12288')
        A(f's_branch {le}')
        A.label(lf)
        A(f's_cmp_eq_u32 {sRole}, 1', f's_cbranch_scc0 {le}')
        A(f's_and_b32 s60, {sW}, 1', 's_lshl_b32 s60, s60, 4', f'v_lshrrev_b32 {vr(t)}, 2, {vLane}', f'v_add_u32 {vr(t)}, s60, {vr(t)}')
        A(f'v_bfe_u32 {vr(t + 1)}, {vr(t)}, 3, 1', f's_and_b32 s60, {sW}, 2', f'v_or_b32 {vr(t + 1)}, s60, {vr(t + 1)}', f'v_xor_b32 {vr(t + 1)}, {vr(c)}, {vr(t + 1)}')
        A(f'v_mul_u32_u24 {vr(t)}, 9216, {vr(t)}', f'v_lshl_add_u32 {vr(RA)}, {vr(t + 1)}, 4, {vr(t)}')
        A(f's_mul_i32 s60, {sW}, 576')
        for i in range(9):
            A(f's_add_u32 s61, s60, {64 * i}', f'v_add_u32 {vr(t)}, s61, {vLane}')
            A(f'v_mul_u32_u24 {vr(t + 1)}, 14564, {vr(t)}', f'v_lshrrev_b32 {vr(t + 1)}, 20, {vr(t + 1)}')
            A(f'v_and_b32 {vr(t + 2)}, 2, {vr(t + 1)}', f'v_bfe_u32 {vr(t + 1)}, {vr(t + 1)}, 3, 1', f'v_lshl_or_b32 {vr(t + 1)}, {vr(t + 1)}, 2, {vr(t + 2)}')
            A(f'v_xor_b32 {vr(t)}, {vr(t)}, {vr(t + 1)}', f'v_lshlrev_b32 {vr(RA + 1 + i)}, 4, {vr(t)}')
        A(f'v_and_b32 {vr(t)}, 1, {vr(g)}', f'v_and_b32 {vr(t + 1)}, 2, {vr(c)}', f'v_or_b32 {vr(t)}, {vr(t)}, {vr(t + 1)}', f'v_xor_b32 {vr(t)}, {sW}, {vr(t)}')
        A(f'v_lshlrev_b32 {vr(t)}, 4, {vr(t)}', f'v_lshl_add_u32 {vr(t)}, {vr(t + 1)}, 10, {vr(t)}', f'v_and_b32 {vr(t + 1)}, 1, {vr(c)}')
        A(f'v_lshl_add_u32 {vr(t)}, {vr(t + 1)}, 3, {vr(t)}', f'v_lshl_add_u32 {vr(t + 1)}, {vr(g)}, 3, {vr(r)}')
        A(f'v_lshl_add_u32 {vr(RA + 10)}, {vr(t + 1)}, 6, {vr(t)}', f'v_add_u32 {vr(RA + 11)}, 36864, {vr(RA + 10)}')
        A(f'v_mul_u32_u24 {vr(t + 1)}, 1152, {vr(t + 1)}', f'v_lshl_add_u32 {vr(t + 1)}, {vr(c)}, 3, {vr(t + 1)}', f'v_add_u32 {vr(t + 1)}, {LW2}, {vr(t + 1)}')
        A(f'v_lshrrev_b32 {vr(t)}, 1, {vr(r)}', f'v_and_b32 {vr(t + 2)}, 1, {vr(g)}', f'v_lshl_or_b32 {vr(t)}, {vr(t + 2)}, 1, {vr(t)}')
        A(f's_mul_i32 s60, {sW}, 9')
        for m in range(4):
            A(f's_add_u32 s61, s60, {m}', f'v_xor_b32 {vr(t + 2)}, s61, {vr(t)}', f'v_lshl_add_u32 {vr(RA + 12 + m)}, {vr(t + 2)}, 5, {vr(t + 1)}')
        A(f's_lshr_b32 s60, {sW}, 1', 's_mul_i32 s60, s60, 2304', f's_and_b32 s61, {sW}, 1', 's_lshl_b32 s62, s61, 10', 's_add_u32 s62, s62, s60')
        A(f's_add_u32 s62, s62, {ABUF}', f'v_lshl_add_u32 {vr(RA + 16)}, {vLane}, 4, s62')
        A('s_lshl_b32 s62, s61, 7', 's_add_u32 s62, s62, s60', f's_add_u32 s62, s62, {ABUF + 2048}')
        A(f'v_and_b32 {vr(t)}, 31, {vLane}', f'v_lshl_add_u32 {vr(t)}, {vr(t)}, 2, s62', f'v_lshrrev_b32 {vr(t + 1)}, 5, {vLane}')
        A(f'v_mul_u32_u24 {vr(t + 1)}, 18432, {vr(t + 1)}', f'v_add_u32 {vr(RA + 17)}, {vr(t)}, {vr(t + 1)}')
        A(f'v_bfe_u32 {vr(t)}, {vLane}, 3, 1', f'v_lshlrev_b32 {vr(t)}, 6, {vr(t)}', f'v_and_b32 {vr(t + 1)}, 7, {vLane}', f'v_lshl_add_u32 {vr(t)}, {vr(t + 1)}, 1, {vr(t)}')
        A(f's_lshl_b32 s60, {sW}, 4', f's_add_u32 s60, s60, {HH}', f'v_add_u32 {vr(RA + 18)}, s60, {vr(t)}')
        A(f'v_and_b32 {vr(t)}, 1, {vLane}', f'v_lshlrev_b32 {vr(t + 1)}, 6, {vr(t)}', f'v_lshl_add_u32 {vr(t + 1)}, {vr(g)}, 4, {vr(t + 1)}', f'v_add_u32 {vr(RA + 19)}, {HH}, {vr(t + 1)}')
        A(f'v_mul_u32_u24 {vr(t)}, 2304, {vr(t)}', f'v_lshl_add_u32 {vr(t)}, {vr(g)}, 4, {vr(t)}')
        A(f's_mul_i32 s60, {sW}, 576', f's_mul_i32 s61, {sGF}, 4608', 's_add_u32 s60, s60, s61', f's_add_u32 s60, s60, {FBUF}', f'v_add_u32 {vr(RA + 20)}, s60, {vr(t)}')
        A(f's_lshl_b32 s77, {sGF}, 6', f's_lshl_b32 s78, {sW}, 10', f's_mul_i32 s79, {sGF}, 36864')
        A.label(le)

    def stream(self):
        A, W, L = self.A, self.W, self.L
        for n in range(7, 8):
            A(f's_waitcnt vmcnt({4 * (W - 1)})')
            self.piece(n, track=False)
        for n in range(0, 8 - L):
            self.consume(n)
        A(f's_mov_b32 {sIt}, 0')
        A.label('L_loop')
        l1, l2 = self.lab('it'), self.lab('it')
        A(f's_cmp_eq_u32 {sIt}, {self.ev_it}', f's_cbranch_scc0 {l1}')
        A(f'buffer_load_dword {vEv}, {vEv}, {WS_SRD}, 0 offen sc1')
        A.label(l1)
        A(f's_cmp_eq_u32 {sIt}, {self.late_pf}', f's_cbranch_scc0 {l2}')
        A(f'global_load_dword v255, {vPf}, {sPC}')
        A.label(l2)
        for n in range(8, 16):
            A(f's_waitcnt vmcnt({4 * (W - 1)})')
            self.piece(n, track=False)
            self.consume(n - L)
        A(f's_add_u32 {sIt}, {sIt}, 1', f's_cmp_lt_u32 {sIt}, 15', 's_cbranch_scc1 L_loop')
        self.stamp(3)
        chk, ok = self.lab('ev'), self.lab('evok')
        A(f's_mov_b32 {sSpin}, {self.spin}')
        A.label(chk)
        A(f'v_cmp_ne_u32 vcc, {sTag}, {vEv}')
        A(f's_cbranch_vccz {ok}', f's_sub_u32 {sSpin}, {sSpin}, 1', f's_cbranch_scc1 {ok}')
        A(f'v_lshlrev_b32 {vEv}, 6, v0', f'v_add_u32 {vEv}, {QBUF + 4}, {vEv}')
        A(f'buffer_load_dword {vEv}, {vEv}, {WS_SRD}, 0 offen sc1', 's_waitcnt vmcnt(0)', f's_branch {chk}')
        A.label(ok)
        for n in range(128 - L, 126):
            if n > 127 - W:
                A(f's_waitcnt vmcnt({4 * (127 - n)})')
            self.consume(n)

    def combine(self):
        A = self.A
        t = T0
        for c in ('quad_perm:[1,0,3,2]', 'quad_perm:[2,3,0,1]', 'row_ror:8'):
            A(f'v_add_f32_dpp {vL}, {vL}, {vL} ' + dpp(c))
        A(f'v_mov_b32 {vr(t)}, {vL}', f'v_permlane16_swap_b32 {vL}, {vr(t)}', f'v_add_f32 {vL}, {vL}, {vr(t)}')
        A(f'v_mov_b32 {vr(t)}, {vL}', f'v_permlane32_swap_b32 {vL}, {vr(t)}', f'v_add_f32 {vL}, {vL}, {vr(t)}')
        A('s_mov_b64 exec, 0x11', f'ds_write_b64 {vMstW}, v[18:19]', 's_mov_b64 exec, -1', 's_waitcnt lgkmcnt(0)', 's_barrier')
        for w in range(4):
            A(f'ds_read_b64 {vr(t + 2 * w, 2)}, {vMstR} offset:{16 * w}')
        A(f'ds_read_b32 {vr(t + 8)}, {vMstO}', 's_waitcnt lgkmcnt(0)')
        mx, ls = t + 10, t + 11
        A(f'v_max3_f32 {vr(mx)}, {vr(t)}, {vr(t + 2)}, {vr(t + 4)}', f'v_max_f32 {vr(mx)}, {vr(mx)}, {vr(t + 6)}')
        for k in (0, 2, 4, 6, 8):
            A(f'v_sub_f32 {vr(t + k)}, {vr(t + k)}, {vr(mx)}')
        for k in (0, 2, 4, 6, 8):
            A(f'v_mul_f32 {vr(t + k)}, {sL2e}, {vr(t + k)}')
        for k in (0, 2, 4, 6, 8):
            A(f'v_exp_f32 {vr(t + k)}, {vr(t + k)}')
        A(f'v_mul_f32 {vr(ls)}, {vr(t)}, {vr(t + 1)}')
        for k in (2, 4, 6):
            A(f'v_fmac_f32 {vr(ls)}, {vr(t + k)}, {vr(t + k + 1)}')
        A(f'v_rcp_f32 {vr(t)}, {vr(ls)}')
        l1 = self.lab('st')
        A(f's_cmp_lt_u32 {sW}, 2', f's_cbranch_scc0 {l1}')
        A(f's_lshl_b32 s60, {sW}, 5', 's_lshl_b64 exec, 1, s60')
        A(f'buffer_store_dwordx2 {vr(mx, 2)}, {vSad}, {WS_SRD}, 0 offen sc1')
        A('s_mov_b64 exec, -1')
        A.label(l1)
        A(f'v_mul_f32 {vr(t + 8)}, {vr(t + 8)}, {vr(t)}')
        for n, cnt in ((126, 4), (127, 0)):
            la, lb = self.lab('w'), self.lab('w')
            A(f's_cmp_lt_u32 {sW}, 2', f's_cbranch_scc1 {la}', f's_waitcnt vmcnt({cnt})')
            A.label(la)
            A(f's_waitcnt vmcnt({cnt + 1})')
            self.consume(n)
        self.stamp(4)
        for r in range(4):
            A(f'v_mul_f32 {vr(ACC + r)}, {vr(ACC + r)}, {vr(t + 8)}')
        A(f'ds_write_b128 {vCmbW}, {vr(ACC, 4)}', 's_waitcnt lgkmcnt(0)', 's_barrier')
        l2 = self.lab('pub')
        A(f's_cmp_lt_u32 {sW}, 2', f's_cbranch_scc0 {l2}')
        for w in range(4):
            A(f'ds_read_b64 {vr(t + 2 * w, 2)}, {vCmbR} offset:{1024 * w}')
        A('s_waitcnt lgkmcnt(2)', f'v_pk_add_f32 {vr(t, 2)}, {vr(t, 2)}, {vr(t + 2, 2)}')
        A('s_waitcnt lgkmcnt(0)', f'v_pk_add_f32 {vr(t + 4, 2)}, {vr(t + 4, 2)}, {vr(t + 6, 2)}', f'v_pk_add_f32 {vr(t, 2)}, {vr(t, 2)}, {vr(t + 4, 2)}')
        A(f'v_cvt_pk_bf16_f32 {vr(t)}, {vr(t)}, {vr(t + 1)}')
        A(f'buffer_store_dword {vr(t)}, {vOad}, {WS_SRD}, 0 offen sc1')
        A.label(l2)
        self.stamp(5)

    def role_t2(self):
        A = self.A
        A('s_mov_b32 s20, s64', 's_mov_b32 s21, s65', f's_mov_b32 s22, {4096 * 1152}', 's_mov_b32 s23, 0x20000')
        for i in range(12):
            A('s_mov_b32 m0, s78')
            A(f'buffer_load_dwordx4 {vr(RA + i % 3)}, {WA_SRD}, s77 offen {self.wpol} lds')
            A('s_add_u32 s78, s78, 1024')
            if i % 3 == 2:
                A('s_add_u32 s77, s77, 36864')
        a, st = T0, T0 + 16

        def loads():
            for ks in range(4):
                A(f'buffer_load_dwordx4 {vr(a + 4 * ks, 4)}, {vr(RA + 4)}, {WS_SRD}, 0 offen offset:{64 * ks} sc1')
            A(f'buffer_load_dwordx2 {vr(st, 2)}, {vr(RA + 5)}, {WS_SRD}, 0 offen sc1')
        loads()
        xr = T0 + 60
        A(f'buffer_load_dwordx2 {vr(xr, 2)}, {vr(RA + 12)}, {X_SRD}, 0 offen')
        A('s_waitcnt vmcnt(6)')
        for ks in range(4):
            for tau in range(3):
                for u in range(2):
                    A(f'ds_read_b64_tr_b16 {ar(128 + 4 * (3 * ks + tau) + 2 * u, 2)}, {vr(RA + 3)} offset:{ks * 3072 + u * 1536 + tau * 32}')
        chk, ok = self.lab('e1'), self.lab('e1ok')
        A(f's_mov_b32 {sSpin}, {self.spin}')
        A.label(chk)
        A('s_waitcnt vmcnt(0)')
        m = T0 + 18
        for k in range(6):
            A(f'v_max3_u32 {vr(m + k)}, {vr(a + 3 * k)}, {vr(a + 3 * k + 1)}, {vr(a + 3 * k + 2)}')
        A(f'v_max3_u32 {vr(m)}, {vr(m)}, {vr(m + 1)}, {vr(m + 2)}', f'v_max3_u32 {vr(m + 3)}, {vr(m + 3)}, {vr(m + 4)}, {vr(m + 5)}', f'v_max_u32 {vr(m)}, {vr(m)}, {vr(m + 3)}')
        A(f'v_cmp_eq_u32 vcc, -1, {vr(m)}')
        A(f's_cbranch_vccz {ok}', f's_sub_u32 {sSpin}, {sSpin}, 1', f's_cbranch_scc1 {ok}')
        loads()
        A(f's_branch {chk}')
        A.label(ok)
        self.stamp(6)
        A('s_waitcnt lgkmcnt(0)')
        D = T0 + 24
        mf = []
        for ks in range(4):
            for tau in range(3):
                c = '0' if ks == 0 else vr(D + 4 * tau, 4)
                mf.append(f'v_mfma_f32_16x16x32_bf16 {vr(D + 4 * tau, 4)}, {vr(a + 4 * ks, 4)}, {ar(128 + 4 * (3 * ks + tau), 4)}, {c}')
        mx, e = m, m + 1
        va = [f'v_max_f32_dpp {vr(mx)}, {vr(st)}, {vr(st)} ' + dpp('quad_perm:[1,0,3,2]'),
              f'v_max_f32_dpp {vr(mx)}, {vr(mx)}, {vr(mx)} ' + dpp('quad_perm:[2,3,0,1]'),
              f'v_max_f32_dpp {vr(mx)}, {vr(mx)}, {vr(mx)} ' + dpp('row_half_mirror'),
              f'v_sub_f32 {vr(e)}, {vr(st)}, {vr(mx)}', f'v_mul_f32 {vr(e)}, {sL2e}, {vr(e)}', f'v_exp_f32 {vr(e)}, {vr(e)}',
              f'v_mul_f32 {vr(e)}, {vr(e)}, {vr(st + 1)}',
              f'v_add_f32_dpp {vr(mx)}, {vr(e)}, {vr(e)} ' + dpp('quad_perm:[1,0,3,2]'),
              f'v_add_f32_dpp {vr(mx)}, {vr(mx)}, {vr(mx)} ' + dpp('quad_perm:[2,3,0,1]'),
              f'v_add_f32_dpp {vr(mx)}, {vr(mx)}, {vr(mx)} ' + dpp('row_half_mirror'),
              f'v_rcp_f32 {vr(mx)}, {vr(mx)}', f'v_mul_f32 {vr(e)}, {vr(e)}, {vr(mx)}']
        for x, y in zip(mf, va):
            A(x, y)
        S = T0 + 40
        for r in range(4):
            for tau in range(3):
                op = 'v_mul_f32_dpp' if r == 0 else 'v_fmac_f32_dpp'
                A(f'{op} {vr(S + tau)}, {vr(e)}, {vr(D + 4 * tau + r)} ' + dpp(f'row_newbcast:{r}'))
        A(f'v_mov_b32 {vr(S + 3)}, {vr(S + 2)}', f'v_permlane16_swap_b32 {vr(S)}, {vr(S + 1)}', f'v_permlane16_swap_b32 {vr(S + 2)}, {vr(S + 3)}')
        A(f'v_add_f32 {vr(S)}, {vr(S)}, {vr(S + 1)}', f'v_add_f32 {vr(S + 2)}, {vr(S + 2)}, {vr(S + 3)}')
        A(f'ds_write_b32 {vr(RA + 6)}, {vr(S)}', f'ds_write_b32 {vr(RA + 7)}, {vr(S + 2)}', 's_waitcnt lgkmcnt(0)', 's_barrier')
        l1 = self.lab('ap')
        A(f's_cmp_lt_u32 {sW}, 2', f's_cbranch_scc0 {l1}')
        A(f'ds_read2_b32 {vr(S, 2)}, {vr(RA + 8)} offset0:0 offset1:96', f'ds_read_b32 {vr(S + 2)}, {vr(RA + 8)} offset:768', f'ds_read_b32 {vr(S + 3)}, {vr(RA + 8)} offset:1152')
        A('s_mov_b32 exec_hi, 0xffff', 's_waitcnt lgkmcnt(0)')
        A(f'v_add_f32 {vr(S)}, {vr(S)}, {vr(S + 1)}', f'v_add_f32 {vr(S + 2)}, {vr(S + 2)}, {vr(S + 3)}', f'v_add_f32 {vr(S)}, {vr(S)}, {vr(S + 2)}')
        A(f'buffer_store_dword {vr(S)}, {vr(RA + 9)}, {WS_SRD}, 0 offen sc1')
        A('s_mov_b64 exec, -1')
        A.label(l1)
        self.stamp(7)
        A(f's_cmp_lt_u32 {sW}, 3', 's_cbranch_scc0 L_fin')
        p = T0 + 44
        chk, ok = self.lab('e2'), self.lab('e2ok')
        A(f's_mov_b32 {sSpin}, {self.spin}')
        A.label(chk)
        A(f'buffer_load_dwordx4 {vr(p, 4)}, {vr(RA + 10)}, {WS_SRD}, 0 offen sc1', 's_waitcnt vmcnt(0)')
        for c in ('quad_perm:[1,0,3,2]', 'quad_perm:[2,3,0,1]', 'row_half_mirror'):
            for k in range(4):
                A(f'v_add_f32_dpp {vr(p + k)}, {vr(p + k)}, {vr(p + k)} ' + dpp(c))
        A(f'v_add_f32 {vr(p + 4)}, {vr(p)}, {vr(p + 1)}', f'v_add_f32 {vr(p + 5)}, {vr(p + 2)}, {vr(p + 3)}', f'v_cmp_u_f32 vcc, {vr(p + 4)}, {vr(p + 5)}')
        self.spin_end(chk, ok)
        A.label(ok)
        hh = T0 + 52
        A(f'v_cvt_pk_bf16_f32 {vr(p)}, {vr(p)}, {vr(p + 1)}', f'v_cvt_pk_bf16_f32 {vr(p + 2)}, {vr(p + 2)}, {vr(p + 3)}')
        for k in range(2):
            A(f'v_lshlrev_b32 {vr(hh + 2 * k)}, 16, {vr(p + 2 * k)}', f'v_and_b32 {vr(hh + 2 * k + 1)}, 0xffff0000, {vr(p + 2 * k)}')
            A(f'v_lshlrev_b32 {vr(p + 4)}, 16, {vr(xr + k)}', f'v_and_b32 {vr(p + 5)}, 0xffff0000, {vr(xr + k)}')
            A(f'v_add_f32 {vr(hh + 2 * k)}, {vr(hh + 2 * k)}, {vr(p + 4)}', f'v_add_f32 {vr(hh + 2 * k + 1)}, {vr(hh + 2 * k + 1)}, {vr(p + 5)}')
            A(f'v_cvt_pk_bf16_f32 {vr(p + 4)}, {vr(hh + 2 * k)}, {vr(hh + 2 * k + 1)}')
            A(f'v_lshlrev_b32 {vr(hh + 2 * k)}, 16, {vr(p + 4)}', f'v_and_b32 {vr(hh + 2 * k + 1)}, 0xffff0000, {vr(p + 4)}')
        self.stamp(8)
        q = T0 + 64
        for k in range(4):
            A(f'v_mov_b32 {vr(q + 8 + k)}, 0')
        A(f's_mov_b32 s60, {64 * 4608}', f's_mov_b32 s61, {128 * 4608}')
        chk, ok = self.lab('e3'), self.lab('e3ok')
        A(f's_mov_b32 {sSpin}, {self.spin}')
        A.label(chk)
        A(f'buffer_load_dwordx4 {vr(q, 4)}, {vr(RA + 11)}, {WS_SRD}, 0 offen sc1')
        A(f'buffer_load_dwordx4 {vr(q + 4, 4)}, {vr(RA + 11)}, {WS_SRD}, s60 offen sc1')
        A('s_mov_b64 exec, 0xffff')
        A(f'buffer_load_dwordx4 {vr(q + 8, 4)}, {vr(RA + 11)}, {WS_SRD}, s61 offen sc1')
        A('s_mov_b64 exec, -1', 's_waitcnt vmcnt(1)')
        A(f'v_pk_add_f32 {vr(q, 2)}, {vr(q, 2)}, {vr(q + 4, 2)}', f'v_pk_add_f32 {vr(q + 2, 2)}, {vr(q + 2, 2)}, {vr(q + 6, 2)}')
        A('s_waitcnt vmcnt(0)')
        A(f'v_pk_add_f32 {vr(q, 2)}, {vr(q, 2)}, {vr(q + 8, 2)}', f'v_pk_add_f32 {vr(q + 2, 2)}, {vr(q + 2, 2)}, {vr(q + 10, 2)}')
        A(f'v_pk_add_f32 {vr(q + 4, 2)}, {vr(q, 2)}, {vr(q + 2, 2)}', f'v_cmp_u_f32 vcc, {vr(q + 4)}, {vr(q + 5)}')
        self.spin_end(chk, ok)
        A.label(ok)
        self.stamp(9)
        for c, row in (('quad_perm:[1,0,3,2]', 0xf), ('quad_perm:[2,3,0,1]', 0xf), ('row_half_mirror', 0xf), ('row_mirror', 0xf),
                       ('row_bcast:15', 0xa), ('row_bcast:31', 0xc)):
            for k in range(4):
                A(f'v_add_f32_dpp {vr(q + k)}, {vr(q + k)}, {vr(q + k)} ' + dpp(c, row=row))
        A(f'v_cvt_pk_bf16_f32 {vr(q)}, {vr(q)}, {vr(q + 1)}', f'v_cvt_pk_bf16_f32 {vr(q + 2)}, {vr(q + 2)}, {vr(q + 3)}')
        A(f'v_lshlrev_b32 {vr(q + 4)}, 16, {vr(q)}', f'v_and_b32 {vr(q + 5)}, 0xffff0000, {vr(q)}')
        A(f'v_lshlrev_b32 {vr(q + 6)}, 16, {vr(q + 2)}', f'v_and_b32 {vr(q + 7)}, 0xffff0000, {vr(q + 2)}')
        A(f'v_pk_add_f32 {vr(q + 4, 2)}, {vr(q + 4, 2)}, {vr(hh, 2)}', f'v_pk_add_f32 {vr(q + 6, 2)}, {vr(q + 6, 2)}, {vr(hh + 2, 2)}')
        A(f'v_cvt_pk_bf16_f32 {vr(q)}, {vr(q + 4)}, {vr(q + 5)}', f'v_cvt_pk_bf16_f32 {vr(q + 1)}, {vr(q + 6)}, {vr(q + 7)}')
        A('s_mov_b32 exec_lo, 0', 's_mov_b32 exec_hi, 0x80000000')
        A(f'buffer_store_dwordx2 {vr(q, 2)}, {vr(RA + 12)}, {OUT_SRD}, 0 offen')
        A(f's_or_b32 s60, {sGF}, {sN}', f's_or_b32 s60, s60, {sW}', 's_cmp_eq_u32 s60, 0', 's_cbranch_scc0 L_fin')
        A(f'v_mov_b32 {vr(q + 2)}, {sTag}', f'v_mov_b32 {vr(q + 3)}, 0')
        A(f'buffer_store_dword {vr(q + 2)}, {vr(q + 3)}, {WS_SRD}, 0 offen sc1')
        A('s_branch L_fin')

    def role_ffn(self):
        A = self.A
        A(f's_cmp_lt_u32 {sW}, 2', 's_cselect_b32 s20, s68, s70', 's_cselect_b32 s21, s69, s71')
        A(f's_mov_b32 s22, {576 * 9216}', 's_mov_b32 s23, 0x20000')
        for ks in range(18):
            A('s_mov_b32 m0, s78')
            A(f'buffer_load_dwordx4 {vr(RA)}, {WA_SRD}, s77 offen {self.wpol} lds')
            A('s_add_u32 s78, s78, 4096', f's_add_u32 s77, s77, {32 * 9216}')
        A(f's_mul_i32 s78, {sW}, 9216', f's_add_u32 s78, s78, {LW2}')
        for i in range(9):
            A('s_mov_b32 m0, s78')
            A(f'buffer_load_dwordx4 {vr(RA + 1 + i)}, {W2_SRD}, s79 offen {self.wpol} lds')
            A('s_add_u32 s78, s78, 1024')
        for G in range(1, 8):
            A(f's_mov_b32 s{55 + G}, {4608 * G}')
        p, e = T0, T0 + 32

        def loads():
            for G in range(8):
                A(f'buffer_load_dwordx4 {vr(p + 4 * G, 4)}, {vr(RA + 16)}, {WS_SRD}, ' + ('0' if G == 0 else f's{55 + G}') + ' offen sc1')
            for G in range(4):
                A(f'buffer_load_dword {vr(e + G)}, {vr(RA + 17)}, {WS_SRD}, ' + ('0' if G == 0 else f's{55 + G}') + ' offen sc1')
        loads()
        x = T0 + 40
        A(f'v_lshlrev_b32 {vr(x)}, 16, {vr(vXo)}', f'v_and_b32 {vr(x + 1)}, 0xffff0000, {vr(vXo)}')
        A(f'v_lshlrev_b32 {vr(x + 2)}, 16, {vr(vXo + 1)}', f'v_and_b32 {vr(x + 3)}, 0xffff0000, {vr(vXo + 1)}')
        A(f'v_lshlrev_b32 {vr(x + 4)}, 16, {vr(vXo + 2)}')
        A('s_waitcnt vmcnt(12)', 's_barrier')
        self.stamp(6)
        for ks in range(18):
            for u in range(2):
                base = RA + 10 + (ks >= 9)
                A(f'ds_read_b64_tr_b16 {ar(128 + 4 * ks + 2 * u, 2)}, {vr(base)} offset:{(ks % 9) * 4096 + u * 256}')
        chk, ok = self.lab('e2'), self.lab('e2ok')
        A(f's_mov_b32 {sSpin}, {self.spin}')
        A.label(chk)
        h = T0 + 48
        A('s_waitcnt vmcnt(9)')
        for G in range(1, 8):
            if G > 2:
                A(f's_waitcnt vmcnt({11 - G})')
            src = p if G == 1 else h
            A(f'v_pk_add_f32 {vr(h, 2)}, {vr(src, 2)}, {vr(p + 4 * G, 2)}', f'v_pk_add_f32 {vr(h + 2, 2)}, {vr(src + 2, 2)}, {vr(p + 4 * G + 2, 2)}')
        A('s_waitcnt vmcnt(0)')
        A(f'v_pk_add_f32 {vr(e, 2)}, {vr(e, 2)}, {vr(e + 2, 2)}', f'v_pk_add_f32 {vr(e + 2, 2)}, {vr(h, 2)}, {vr(h + 2, 2)}')
        A(f'v_add_f32 {vr(h + 4)}, {vr(e)}, {vr(e + 1)}', f'v_add_f32 {vr(e + 2)}, {vr(e + 2)}, {vr(e + 3)}')
        A(f'v_cmp_u_f32 vcc, {vr(h + 4)}, {vr(e + 2)}')
        A(f's_cbranch_vccz {ok}', f's_sub_u32 {sSpin}, {sSpin}, 1', f's_cbranch_scc1 {ok}')
        loads()
        A(f's_branch {chk}')
        A.label(ok)
        self.stamp(7)
        A(f'v_mov_b32 {vr(e)}, {vr(h + 4)}')
        A(f'v_cvt_pk_bf16_f32 {vr(h + 1)}, {vr(h)}, {vr(h + 1)}', f'v_permlane32_swap_b32 {vr(h + 4)}, {vr(e)}', f'v_cvt_pk_bf16_f32 {vr(h + 3)}, {vr(h + 2)}, {vr(h + 3)}')
        A(f'v_add_f32 {vr(h + 4)}, {vr(h + 4)}, {vr(e)}')
        A(f'v_lshlrev_b32 {vr(h)}, 16, {vr(h + 1)}', f'v_and_b32 {vr(h + 1)}, 0xffff0000, {vr(h + 1)}', f'v_cvt_pk_bf16_f32 {vr(h + 4)}, {vr(h + 4)}, {vr(h + 4)}')
        A(f'v_lshlrev_b32 {vr(h + 2)}, 16, {vr(h + 3)}', f'v_and_b32 {vr(h + 3)}, 0xffff0000, {vr(h + 3)}', f'v_lshlrev_b32 {vr(h + 4)}, 16, {vr(h + 4)}')
        A(f'v_pk_add_f32 {vr(h, 2)}, {vr(h, 2)}, {vr(x, 2)}', f'v_pk_add_f32 {vr(h + 2, 2)}, {vr(h + 2, 2)}, {vr(x + 2, 2)}', f'v_add_f32 {vr(h + 4)}, {vr(h + 4)}, {vr(x + 4)}')
        A(f'v_cvt_pk_bf16_f32 {vr(h + 1)}, {vr(h)}, {vr(h + 1)}', f'v_cvt_pk_bf16_f32 {vr(h + 3)}, {vr(h + 2)}, {vr(h + 3)}', f'v_cvt_pk_bf16_f32 {vr(h + 4)}, {vr(h + 4)}, {vr(h + 4)}')
        A(f'v_lshlrev_b32 {vr(h)}, 16, {vr(h + 1)}', f'v_and_b32 {vr(h + 1)}, 0xffff0000, {vr(h + 1)}')
        A(f'v_lshlrev_b32 {vr(h + 2)}, 16, {vr(h + 3)}', f'v_and_b32 {vr(h + 3)}, 0xffff0000, {vr(h + 3)}', f'v_lshlrev_b32 {vr(h + 4)}, 16, {vr(h + 4)}')
        self.layernorm(h, T0 + 56)
        D = T0
        reads = [f'ds_read_b128 {ar(4 * ks, 4)}, {vHNa} offset:{64 * ks}' for ks in range(18)]
        for tau in range(9):
            for u in range(2):
                reads.append(f'ds_read_b64_tr_b16 {ar(200 + 4 * tau + 2 * u, 2)}, {vr(RA + 12 + tau % 4)} offset:{(tau // 4) * 128 + u * 4608}')
        issued = 0
        for _ in range(15):
            A(reads[issued]); issued += 1
        for ks in range(18):
            A(f's_waitcnt lgkmcnt({issued - ks - 1})')
            A(f'v_mfma_f32_16x16x32_bf16 {vr(D, 4)}, {ar(4 * ks, 4)}, {ar(128 + 4 * ks, 4)}, ' + ('0' if ks == 0 else vr(D, 4)))
            while issued < len(reads) and issued - (ks + 1) < 15:
                A(reads[issued]); issued += 1
        while issued < len(reads):
            A(reads[issued]); issued += 1
        gt, up = T0 + 4, T0 + 5
        A(f'v_mov_b32 {vr(gt)}, {vr(D)}', f'v_mov_b32 {vr(up)}, {vr(D + 1)}')
        A(f'v_mov_b32_dpp {vr(gt)}, {vr(D + 1)} ' + dpp('row_shr:8', bank=0xc), f'v_mov_b32_dpp {vr(up)}, {vr(D)} ' + dpp('row_shl:8', bank=0x3))
        A(f'v_cvt_pk_bf16_f32 {vr(up)}, {vr(gt)}, {vr(up)}', f'v_lshlrev_b32 {vr(gt)}, 16, {vr(up)}', f'v_and_b32 {vr(up)}, 0xffff0000, {vr(up)}')
        e = T0 + 6
        A(f'v_mul_f32 {vr(e)}, {sL2e}, {vr(gt)}', f'v_exp_f32 {vr(e)}, -{vr(e)}', f'v_add_f32 {vr(e)}, 1.0, {vr(e)}', f'v_rcp_f32 {vr(e)}, {vr(e)}')
        A(f'v_mul_f32 {vr(e)}, {vr(gt)}, {vr(e)}', f'v_cvt_pk_bf16_f32 {vr(e)}, {vr(e)}, {vr(e)}', f'v_lshlrev_b32 {vr(e)}, 16, {vr(e)}')
        A(f'v_mul_f32 {vr(e)}, {vr(e)}, {vr(up)}', f'v_cvt_pk_bf16_f32 {vr(e)}, {vr(e)}, {vr(e)}')
        A('s_mov_b64 exec, 0xffff', f'ds_write_b16 {vr(RA + 18)}, {vr(e)}', 's_mov_b64 exec, -1', 's_waitcnt lgkmcnt(0)', 's_barrier')
        self.stamp(8)
        B = T0 + 8
        A(f'ds_read_b128 {vr(B, 4)}, {vr(RA + 19)}', 's_waitcnt lgkmcnt(0)')
        D2 = T0 + 12
        for tau in range(9):
            A(f'v_mfma_f32_16x16x32_bf16 {vr(D2 + 4 * tau, 4)}, {ar(200 + 4 * tau, 4)}, {vr(B, 4)}, 0')
        A('s_mov_b32 exec_lo, 0x30003', 's_mov_b32 exec_hi, 0x30003')
        for tau in range(9):
            A(f'buffer_store_dwordx4 {vr(D2 + 4 * tau, 4)}, {vr(RA + 20)}, {WS_SRD}, 0 offen offset:{64 * tau} sc1')
        self.stamp(9)

    def fin(self):
        A = self.A
        A.label('L_fin')
        if self.diag:
            A('s_mov_b64 exec, 1', 's_getreg_b32 s60, hwreg(HW_REG_XCC_ID)', 's_and_b32 s60, s60, 15', f's_lshl_b32 s61, {sRole}, 4', 's_or_b32 s60, s60, s61')
            A('s_lshl_b32 s61, s2, 2', f's_add_u32 s61, s61, {sW}', 's_lshl_b32 s61, s61, 6', f's_add_u32 s61, s61, {STAMPS}', 'v_mov_b32 v1, s61')
            A('s_waitcnt vmcnt(0)', 's_memrealtime s[100:101]', 's_waitcnt lgkmcnt(0)')
            for k in range(11):
                A(f'v_mov_b32 v2, s{80 + 2 * k}', f'global_store_dword v1, v2, s[12:13] offset:{4 * k}')
            A('v_mov_b32 v2, s60', 'global_store_dword v1, v2, s[12:13] offset:60')
        A.label('L_end')
        A('s_endpgm')

    def build(self):
        A = self.A
        if self.diag:
            for k in range(80, 102):
                A(f's_mov_b32 s{k}, 0')
        self.head()
        self.stream()
        self.combine()
        A(f's_cmp_eq_u32 {sRole}, 1', 's_cbranch_scc1 L_ffn', f's_cmp_eq_u32 {sRole}, 0', 's_cbranch_scc0 L_fin')
        self.role_t2()
        A.label('L_ffn')
        self.role_ffn()
        self.fin()
        self.slow_paths()
        A.label('L_codeend')
        return A.finish()


HEADER = open(os.path.join(os.path.dirname(os.path.abspath(__file__)), 'header.txt')).read()


def make(**kw):
    g = Gen(**kw)
    body = g.build()
    return f"""{HEADER}; @launch grid=(256,1,1) block=(256,1,1) lds={LDS_BYTES}
.amdgcn_target "amdgcn-amd-amdhsa--gfx950"
.text
.globl {KNAME}
.p2align 8
.type {KNAME},@function
{KNAME}:
{body}
.section .rodata,"a"
.p2align 6
.amdhsa_kernel {KNAME}
  .amdhsa_next_free_vgpr 512
  .amdhsa_next_free_sgpr 102
  .amdhsa_accum_offset 256
  .amdhsa_group_segment_fixed_size 0
  .amdhsa_kernarg_size 96
  .amdhsa_user_sgpr_count 2
  .amdhsa_user_sgpr_kernarg_segment_ptr 1
  .amdhsa_system_sgpr_workgroup_id_x 1
  .amdhsa_float_denorm_mode_32 3
.end_amdhsa_kernel
"""


if __name__ == '__main__':
    out = sys.argv[1]
    kw = {}
    for a in sys.argv[2:]:
        k, v = a.split('=')
        kw[k] = int(v) if v.lstrip('-').isdigit() else v.replace('+', ' ')
    open(out, 'w').write(make(**kw))
```

```python
import sys, os, struct
sys.path.insert(0, os.path.dirname(os.path.abspath(__file__)))
from emit import Asm

KNAME = "sequential_preLN__gqa_block_cached__glu_gated_swiglu__decode_kernel"

FLAG2, FLAG3 = 1536 << 10, 1792 << 10
EPOCH, CNT, OBUF, SBUF, ABUF, FBUF, QBUF = 0, 4096, 65536, 1408 << 10, 204800, 262144, 1 << 20
WS_BYTES = 2 << 20
STAMPS = 16 << 20
LW = 0
LW2 = 73728
SCR = 110592
CTR, HRES, FIN = SCR + 8704, SCR + 8768, SCR + 8832
HN, STAT, QL, MST, HH, RED, CMB = SCR, SCR + 2304, SCR + 2368, SCR + 2880, SCR + 2944, SCR + 3072, SCR + 4608
LDS_BYTES = SCR + 8832 + 1024

def f2u(x):
    return struct.unpack('<I', struct.pack('<f', x))[0]

sW = 's3'
K_SRD, V_SRD, WS_SRD, X_SRD, WA_SRD, W2_SRD, OUT_SRD = 's[4:7]', 's[8:11]', 's[12:15]', 's[16:19]', 's[20:23]', 's[24:27]', 's[28:31]'
sT, sIt, sTag, sRole, sGF, sN, sScale, sL2e = 's32', 's33', 's34', 's35', 's36', 's37', 's38', 's39'
mQ1, mQ2, mQ3 = 's[40:41]', 's[42:43]', 's[44:45]'
sPC = 's[46:47]'
mHi, mPar = 's[72:73]', 's[74:75]'
sSpin = 's50'
sPool, sB, sG, sS = 's51', 's52', 's53', 's54'
W3_SRD = 's[64:67]'
sH = 's68'
vLane = 'v1'
vK0, vK1, vV0, vV1 = 'v2', 'v3', 'v4', 'v5'
SEL = 6
BQ = 10
vM, vL = 'v18', 'v19'
ACC = 20
DQ = 24
SS = 40
PA = 48
vXo = 80
vEv = 'v84'
vOad, vSad = 'v85', 'v86'
vHNo, vHNe, vStW, vStR, vHNa = 'v87', 'v88', 'v89', 'v90', 'v91'
vCmbW, vCmbR, vMstW, vMstR, vMstO = 'v92', 'v93', 'v94', 'v95', 'v96'
vPf = 'v97'
vC, vCa = 'v98', 'v99'
vQw, vQg, vQr = 'v83', 'v47', 'v46'
HA = 200
RA = 100
T0 = 128


def vr(a, n=1):
    return f'v{a}' if n == 1 else f'v[{a}:{a + n - 1}]'


def ar(a, n=1):
    return f'a{a}' if n == 1 else f'a[{a}:{a + n - 1}]'


def dpp(ctrl, row=0xf, bank=0xf, bc=False):
    return f'{ctrl} row_mask:{row:#x} bank_mask:{bank:#x}' + (' bound_ctrl:0' if bc else '')


class VM:
    def __init__(self, A):
        self.A, self.q = A, []

    def op(self, text, tag=None):
        self.A(text)
        self.q.append(tag)

    def wait(self, tag):
        last = max(i for i, t in enumerate(self.q) if t == tag)
        n = len(self.q) - 1 - last
        assert n <= 63
        self.A(f's_waitcnt vmcnt({n})')
        self.q = self.q[last + 1:]


class Gen:
    def __init__(self, W=4, L=7, diag=0, spin=8192, pol='nt', wpol='nt', pad=0, NS=54, npre=3, e13=18, e2=18, eo=8, late_pf=48, pace=4, smask=0x7ff, a13=2, b13=4, ao=2, bo=4, sleep=0, sl3=0, sl2=0, sl1=0, repf=0, f3=1, f2=1, e1s=1, rep3=8, sstr=128):
        self.rep3, self.sstr = rep3, sstr
        self.f3, self.f2, self.e1s = f3, f2, e1s
        self.repf = repf
        self.sl3, self.sl2, self.sl1 = sl3, sl2, sl1
        self.smask, self.a13, self.b13, self.ao, self.bo, self.sleep = smask, a13, b13, ao, bo, sleep
        self.pace = pace
        assert W <= 4 and late_pf % 2 == 0 and a13 <= b13 <= e13 and ao <= bo <= eo
        self.pad, self.NS, self.npre, self.e13, self.e2, self.eo = pad, NS, npre, e13, e2, eo
        self.W, self.L, self.diag, self.spin, self.pol, self.wpol = W, L, diag, spin, pol, wpol
        self.late_pf = late_pf
        self.A = Asm()
        self.vm = VM(self.A)
        self.slow = []
        self.nlab = 0

    def lab(self, base):
        self.nlab += 1
        return f'L_{base}{self.nlab}'

    def stamp(self, k):
        if self.diag and (self.smask >> k) & 1:
            self.A('s_memrealtime s[100:101]', 's_waitcnt lgkmcnt(0)', f's_mov_b32 s{80 + k}, s100')

    def piece(self, n, track=True):
        kind, slot = n & 3, n & 7
        srd = K_SRD if kind < 2 else V_SRD
        va = (vK0, vK1, vV0, vV1)[kind]
        for t in range(4):
            txt = f'buffer_load_dwordx4 {ar(slot * 16 + 4 * t, 4)}, {va}, {srd}, {sT} offen offset:{t * 1024} {self.pol}'
            if track:
                self.vm.op(txt, ('P', n))
            else:
                self.A(txt)

    def consume(self, n):
        A = self.A
        kind, slot = n & 3, n & 7
        if kind < 2:
            for t in range(4):
                d = DQ + 4 * (2 * kind + t // 2)
                c = '0' if t % 2 == 0 else vr(d, 4)
                A(f'v_mfma_f32_16x16x32_bf16 {vr(d, 4)}, {ar(slot * 16 + 4 * t, 4)}, {vr(BQ + 4 * (t & 1), 4)}, {c}')
            if kind == 1:
                self.softmax()
        else:
            for t in range(4):
                tt = 4 * (kind - 2) + t
                A(f'v_mfma_f32_16x16x32_bf16 {vr(ACC, 4)}, {vr(PA + 4 * tt, 4)}, {ar(slot * 16 + 4 * t, 4)}, {vr(ACC, 4)}')

    def softmax(self):
        A = self.A
        for m in range(4):
            A(f'v_mov_b32_dpp {vr(SS + m)}, {vr(DQ + 4 * m)} ' + dpp('quad_perm:[0,0,0,0]'))
            for b in range(1, 4):
                A(f'v_add_f32_dpp {vr(SS + m)}, {vr(DQ + 4 * m + b)}, {vr(SS + m)} ' + dpp(f'quad_perm:[{b},{b},{b},{b}]'))
        R, P, Tm = 'v44', 'v45', 'v46'
        A(f'v_cndmask_b32 {R}, {vr(SS)}, {vr(SS + 1)}, {mQ1}')
        A(f'v_cndmask_b32 {R}, {R}, {vr(SS + 2)}, {mQ2}')
        A(f'v_cndmask_b32 {R}, {R}, {vr(SS + 3)}, {mQ3}')
        A(f'v_cvt_pk_bf16_f32 {R}, {R}, {R}')
        A(f'v_lshlrev_b32 {R}, 16, {R}')
        A(f'v_mul_f32 {R}, {sScale}, {R}')
        A(f'v_cvt_pk_bf16_f32 {R}, {R}, {R}')
        A(f'v_lshlrev_b32 {R}, 16, {R}')
        slow, back = self.lab('slow'), self.lab('back')
        A(f'v_cmp_gt_f32 vcc, {R}, {vM}')
        A(f's_cbranch_vccnz {slow}')
        A.label(back)
        self.slow.append((slow, back))
        A(f'v_sub_f32 {P}, {R}, {vM}')
        A(f'v_mul_f32 {P}, {sL2e}, {P}')
        A(f'v_exp_f32 {P}, {P}')
        A(f'v_add_f32 {vL}, {vL}, {P}')
        A(f'v_mov_b32_dpp {Tm}, {P} ' + dpp('row_shl:4', bc=True))
        A(f'v_cvt_pk_bf16_f32 {P}, {P}, {Tm}')
        for t in range(8):
            A(f'v_mov_b32_dpp {vr(SS + (t & 3))}, {P} ' + dpp(f'row_newbcast:{8 * (t & 1) + (t >> 1)}'))
            if t % 4 == 3:
                for tt in range(t - 3, t + 1):
                    for d in range(4):
                        b = vr(SS + (tt & 3))
                        A(f'v_perm_b32 {vr(PA + 4 * tt + d)}, {b}, {b}, {vr(SEL + d)}')

    def slow_paths(self):
        A = self.A
        R, t, t2, f = 'v44', 'v45', 'v46', 'v47'
        for slow, back in self.slow:
            A.label(slow)
            A(f'v_max_f32_dpp {t}, {R}, {R} ' + dpp('quad_perm:[1,0,3,2]'))
            A(f'v_max_f32_dpp {t}, {t}, {t} ' + dpp('quad_perm:[2,3,0,1]'))
            A(f'v_max_f32_dpp {t}, {t}, {t} ' + dpp('row_ror:8'))
            A(f'v_mov_b32 {t2}, {t}', f'v_permlane16_swap_b32 {t}, {t2}', f'v_max_f32 {t}, {t}, {t2}')
            A(f'v_mov_b32 {t2}, {t}', f'v_permlane32_swap_b32 {t}, {t2}', f'v_max3_f32 {t}, {t}, {t2}, {vM}')
            A(f'v_sub_f32 {f}, {vM}, {t}', f'v_mul_f32 {f}, {sL2e}, {f}', f'v_exp_f32 {f}, {f}')
            A(f'v_mov_b32 {vM}, {t}', f'v_mul_f32 {vL}, {vL}, {f}')
            A(f'v_readlane_b32 s48, {f}, 0', f'v_readlane_b32 s49, {f}, 4')
            A(f'v_mov_b32 {t}, s48', f'v_mov_b32 {t2}, s49', f'v_cndmask_b32 {t}, {t}, {t2}, {mHi}')
            for r in range(4):
                A(f'v_mul_f32 {vr(ACC + r)}, {vr(ACC + r)}, {t}')
            A('s_nop 1', f's_branch {back}')

    def layernorm(self, h, tmp, mid=None, pre=None):
        A = self.A
        d, s1, s2, hx = tmp, tmp + 6, tmp + 7, tmp + 5
        A(f'v_readfirstlane_b32 s48, {vr(h)}')
        for k in range(5):
            A(f'v_subrev_f32 {vr(d + k)}, s48, {vr(h + k)}')
        A(f'v_mul_f32 {vr(hx)}, 0.5, {vr(d + 4)}')
        A(f'v_add_f32 {vr(s1)}, {vr(d)}, {vr(d + 1)}', f'v_mul_f32 {vr(s2)}, {vr(d)}, {vr(d)}')
        A(f'v_add_f32 {vr(s1)}, {vr(s1)}, {vr(d + 2)}', f'v_fmac_f32 {vr(s2)}, {vr(d + 1)}, {vr(d + 1)}')
        A(f'v_add_f32 {vr(s1)}, {vr(s1)}, {vr(d + 3)}', f'v_fmac_f32 {vr(s2)}, {vr(d + 2)}, {vr(d + 2)}')
        A(f'v_add_f32 {vr(s1)}, {vr(s1)}, {vr(hx)}', f'v_fmac_f32 {vr(s2)}, {vr(d + 3)}, {vr(d + 3)}')
        A(f'v_mov_b32 {vr(tmp + 8)}, s48', f'v_fmac_f32 {vr(s2)}, {vr(hx)}, {vr(d + 4)}')
        for c, row in (('quad_perm:[1,0,3,2]', 0xf), ('quad_perm:[2,3,0,1]', 0xf), ('row_half_mirror', 0xf), ('row_mirror', 0xf),
                       ('row_bcast:15', 0xa), ('row_bcast:31', 0xc)):
            for s in (s1, s2):
                A(f'v_add_f32_dpp {vr(s)}, {vr(s)}, {vr(s)} ' + dpp(c, row=row))
        A('s_mov_b32 exec_lo, 0', 's_mov_b32 exec_hi, 0x80000000')
        A(f'ds_write_b96 {vStW}, {vr(s1, 3)}')
        A('s_mov_b64 exec, -1')
        if pre:
            pre()
        A('s_waitcnt lgkmcnt(0)', 's_barrier')
        a, b = tmp + 10, tmp + 14
        A(f'ds_read_b96 {vr(a, 3)}, {vStR}', f'ds_read_b96 {vr(b, 3)}, {vStR} offset:16')
        if mid:
            mid()
        A(f's_mov_b32 s48, {f2u(1 / 288):#x}', f's_mov_b32 s49, {f2u(144.0):#x}', f's_waitcnt lgkmcnt({10 if mid else 0})')
        ta, tb = tmp, tmp + 1
        A(f'v_mul_f32 {vr(ta)}, s48, {vr(a)}', f'v_mul_f32 {vr(tb)}, s48, {vr(b)}')
        A(f'v_fma_f32 {vr(a + 1)}, -{vr(ta)}, {vr(a)}, {vr(a + 1)}', f'v_fma_f32 {vr(b + 1)}, -{vr(tb)}, {vr(b)}, {vr(b + 1)}')
        A(f'v_add_f32 {vr(ta)}, {vr(ta)}, {vr(a + 2)}', f'v_add_f32 {vr(tb)}, {vr(tb)}, {vr(b + 2)}')
        A(f'v_add_f32 {vr(a + 1)}, {vr(a + 1)}, {vr(b + 1)}', f'v_sub_f32 {vr(a)}, {vr(ta)}, {vr(tb)}')
        A(f'v_add_f32 {vr(ta)}, {vr(ta)}, {vr(tb)}', f'v_mul_f32 {vr(b)}, s49, {vr(a)}')
        A(f'v_mul_f32 {vr(ta)}, 0.5, {vr(ta)}', f'v_fmac_f32 {vr(a + 1)}, {vr(b)}, {vr(a)}')
        A(f's_mov_b32 s48, {f2u(1 / 576):#x}', f's_mov_b32 s49, {f2u(1e-5):#x}')
        A(f'v_mul_f32 {vr(a + 1)}, s48, {vr(a + 1)}', f'v_max_f32 {vr(a + 1)}, 0, {vr(a + 1)}')
        A(f'v_cvt_pk_bf16_f32 {vr(ta)}, {vr(ta)}, {vr(a + 1)}')
        mu, den = tmp + 6, tmp + 7
        A(f'v_and_b32 {vr(den)}, 0xffff0000, {vr(ta)}', f'v_lshlrev_b32 {vr(mu)}, 16, {vr(ta)}')
        A(f'v_add_f32 {vr(den)}, s49, {vr(den)}')
        for k in range(5):
            A(f'v_sub_f32 {vr(d + k)}, {vr(h + k)}, {vr(mu)}')
            if k == 0:
                A(f'v_cvt_pk_bf16_f32 {vr(den)}, {vr(den)}, {vr(den)}')
            if k == 1:
                A(f'v_lshlrev_b32 {vr(den)}, 16, {vr(den)}')
            if k == 2:
                A(f'v_sqrt_f32 {vr(den)}, {vr(den)}')
        A(f'v_cvt_pk_bf16_f32 {vr(den)}, {vr(den)}, {vr(den)}')
        A(f'v_cvt_pk_bf16_f32 {vr(d + 1)}, {vr(d)}, {vr(d + 1)}')
        A(f'v_lshlrev_b32 {vr(den)}, 16, {vr(den)}')
        A(f'v_cvt_pk_bf16_f32 {vr(d + 3)}, {vr(d + 2)}, {vr(d + 3)}')
        A(f'v_rcp_f32 {vr(den)}, {vr(den)}')
        A(f'v_cvt_pk_bf16_f32 {vr(d + 4)}, {vr(d + 4)}, {vr(d + 4)}')
        A(f'v_lshlrev_b32 {vr(d)}, 16, {vr(d + 1)}', f'v_and_b32 {vr(d + 1)}, 0xffff0000, {vr(d + 1)}')
        A(f'v_lshlrev_b32 {vr(d + 2)}, 16, {vr(d + 3)}', f'v_and_b32 {vr(d + 3)}, 0xffff0000, {vr(d + 3)}')
        A(f'v_lshlrev_b32 {vr(d + 4)}, 16, {vr(d + 4)}')
        for k in range(5):
            A(f'v_mul_f32 {vr(d + k)}, {vr(d + k)}, {vr(den)}')
        o = tmp + 10
        A(f'v_cvt_pk_bf16_f32 {vr(o)}, {vr(d)}, {vr(d + 1)}', f'v_cvt_pk_bf16_f32 {vr(o + 1)}, {vr(d + 2)}, {vr(d + 3)}')
        A(f'v_cvt_pk_bf16_f32 {vr(o + 2)}, {vr(d + 4)}, {vr(d + 4)}')
        A(f'ds_write_b64 {vHNo}, {vr(o, 2)}', f'ds_write_b16 {vHNe}, {vr(o + 2)}')
        A('s_waitcnt lgkmcnt(0)', 's_barrier')

    def wait2(self, n_stream, n_help):
        A = self.A
        la, lb = self.lab('w'), self.lab('w')
        A(f's_cmp_eq_u32 {sH}, 0', f's_cbranch_scc1 {la}', f's_waitcnt vmcnt({n_help})', f's_branch {lb}')
        A.label(la)
        A(f's_waitcnt vmcnt({n_stream})')
        A.label(lb)

    def spin_end(self, retry, ok):
        A = self.A
        A(f's_cbranch_vccz {ok}', f's_sub_u32 {sSpin}, {sSpin}, 1', f's_cbranch_scc0 {retry}')

    def head(self):
        A, vm = self.A, self.vm
        A('s_cmp_ge_u32 s2, 256', 's_cbranch_scc1 L_end')
        A('s_load_dwordx2 s[16:17], s[0:1], 0', 's_load_dwordx2 s[20:21], s[0:1], 24', 's_load_dwordx2 s[12:13], s[0:1], 88')
        A('s_load_dwordx2 s[4:5], s[0:1], 8', 's_load_dwordx2 s[8:9], s[0:1], 16')
        A(f's_getpc_b64 {sPC}')
        A.label('L_pc')
        A(f's_sub_u32 s46, s46, L_pc-{KNAME}', 's_subb_u32 s47, s47, 0')
        A(f'v_lshlrev_b32 {vPf}, 7, v0', f'v_min_u32 {vPf}, L_codeend-{KNAME}-4, {vPf}')
        vm.op(f'global_load_dword v255, {vPf}, {sPC}')
        A('s_load_dwordx2 s[24:25], s[0:1], 64', 's_load_dwordx2 s[28:29], s[0:1], 72')
        A('s_load_dwordx2 s[94:95], s[0:1], 32', 's_load_dwordx4 s[96:99], s[0:1], 48')
        self.stamp(0)
        A(f'v_lshrrev_b32 v2, 6, v0', f'v_and_b32 {vLane}, 63, v0', f'v_readfirstlane_b32 {sW}, v2')
        A(f's_cmp_lt_u32 {sW}, 2', f's_cselect_b32 {sH}, 0, 1')
        for base, size in ((6, 0x10000000), (10, 0x10000000), (14, WS_BYTES), (18, 2304), (22, 576 * 8192), (26, 4608 * 1152), (30, 2304)):
            A(f's_mov_b32 s{base}, {size:#x}', f's_mov_b32 s{base + 1}, 0x20000')
        A(f's_and_b32 {sS}, s2, 7', 's_lshr_b32 s55, s2, 3', f's_and_b32 {sB}, s55, 1', f's_lshr_b32 {sG}, s55, 1')
        A(f's_lshr_b32 s58, {sW}, 1', 's_mul_i32 s56, s58, 1152', f's_and_b32 s59, {sW}, 1')
        A('s_lshl_b32 s57, s59, 6', 's_add_u32 s57, s57, s56', 's_add_u32 s57, s57, 1024')
        A('s_lshl_b32 s60, s59, 9', 's_add_u32 s56, s56, s60')
        t = T0
        A(f'v_lshlrev_b32 {vr(t)}, 3, {vLane}', f'v_and_b32 {vr(t + 1)}, 31, {vLane}', f'v_lshlrev_b32 {vr(t + 1)}, 1, {vr(t + 1)}')
        A(f'v_lshrrev_b32 {vr(t + 2)}, 3, {vLane}', f'v_lshlrev_b32 {vr(t + 2)}, 13, {vr(t + 2)}')
        A(f'v_bfe_u32 {vr(t + 3)}, {vLane}, 4, 1', 's_lshl_b32 s60, s59, 1', f'v_or_b32 {vr(t + 3)}, s60, {vr(t + 3)}', f'v_lshlrev_b32 {vr(t + 3)}, 1, {vr(t + 3)}')
        A(f'v_and_b32 {vr(t + 4)}, 7, {vLane}', f'v_xor_b32 {vr(t + 3)}, {vr(t + 3)}, {vr(t + 4)}', f'v_lshl_or_b32 {vr(t + 2)}, {vr(t + 3)}, 4, {vr(t + 2)}')
        A('s_and_b32 s58, s2, 3', 's_lshr_b32 s62, s2, 2', 's_lshl_b32 s62, s62, 7', 's_lshl_b32 s60, s58, 18', 's_add_u32 s62, s62, s60')
        A(f's_lshl_b32 s60, {sW}, 16', 's_add_u32 s62, s62, s60', f's_lshl_b32 s63, {sW}, 10')
        A(f'v_mov_b32 {vr(t + 3)}, 0')
        A('s_waitcnt lgkmcnt(0)')
        vm.op(f'buffer_load_dwordx2 {vr(vXo, 2)}, {vr(t)}, {X_SRD}, s56 offen', 'x')
        vm.op(f'buffer_load_ushort {vr(vXo + 2)}, {vr(t + 1)}, {X_SRD}, s57 offen', 'x')
        vm.op(f'buffer_load_dword {vr(t + 8)}, {vr(t + 3)}, {WS_SRD}, 0 offen sc1', 'ep')
        l3 = self.lab('wq')
        for j in range(5):
            if j == 4:
                A('s_cmp_lt_u32 s58, 2', f's_cbranch_scc0 {l3}')
            A('s_mov_b32 m0, s63')
            txt = f'buffer_load_dwordx4 {vr(t + 2)}, {WA_SRD}, s62 offen {self.wpol} lds'
            vm.op(txt, 'wq') if j < 4 else A(txt)
            A('s_add_u32 s62, s62, 0x100000', 's_add_u32 s63, s63, 4096')
        A.label(l3)
        ls = self.lab('st')
        A(f's_cmp_eq_u32 {sH}, 0', f's_cbranch_scc0 {ls}')
        A(f'v_bfe_u32 {vK0}, {vLane}, 2, 2', f'v_lshlrev_b32 {vK0}, 8, {vK0}', f'v_lshrrev_b32 {vK1}, 4, {vLane}')
        A(f'v_lshl_or_b32 {vK0}, {vK1}, 6, {vK0}', f'v_and_b32 {vK1}, 3, {vLane}', f'v_lshl_or_b32 {vK0}, {vK1}, 4, {vK0}')
        A(f'v_add_u32 {vK1}, 4096, {vK0}', f'v_lshlrev_b32 {vV0}, 4, {vLane}', f'v_add_u32 {vV1}, 4096, {vV0}')
        A(f's_lshl_b32 {sPool}, {sB}, 4', f's_add_u32 {sPool}, {sPool}, {sG}', f's_lshl_b32 {sPool}, {sPool}, 23')
        A(f's_lshl_b32 s60, {sS}, 1', f's_add_u32 s60, s60, {sW}', 's_lshl_b32 s60, s60, 13', f's_add_u32 {sT}, {sPool}, s60')
        A(f's_add_u32 {sPool}, {sPool}, {self.NS * 131072}')
        for n in range(self.npre):
            if n == 4:
                A(f's_add_u32 {sT}, {sT}, 131072')
            self.piece(n, track=False)
        A.label(ls)
        self.setup_early()
        self.prefill()
        self.wait2(5 + 4 * self.npre, 7)
        h = T0 + 16
        A(f'v_lshlrev_b32 {vr(h)}, 16, {vr(vXo)}', f'v_and_b32 {vr(h + 1)}, 0xffff0000, {vr(vXo)}')
        A(f'v_lshlrev_b32 {vr(h + 2)}, 16, {vr(vXo + 1)}', f'v_and_b32 {vr(h + 3)}, 0xffff0000, {vr(vXo + 1)}')
        A(f'v_lshlrev_b32 {vr(h + 4)}, 16, {vr(vXo + 2)}')

        def wq_wait():
            self.wait2(4 * self.npre, 0)
            A(f'v_readfirstlane_b32 {sTag}, {vr(t + 8)}')
            A(f's_mul_i32 {sTag}, {sTag}, 0x9E3779B1', f's_add_u32 {sTag}, {sTag}, 0x7F4A7C15')

        a0, b0, d0 = T0 + 48, T0 + 68, T0 + 88

        def wq_reads():
            for j in range(5):
                for u in range(2):
                    A(f'ds_read_b64_tr_b16 {vr(b0 + 4 * j + 2 * u, 2)}, {vr(T0 + 11)} offset:{j * 4096 + u * 512}')
        self.layernorm(h, T0 + 24, mid=wq_reads, pre=wq_wait)
        for j in range(5):
            A(f'ds_read_b128 {vr(a0 + 4 * j, 4)}, {vr(T0 + 10)} offset:{j * 256}')
        for j in range(4):
            A(f's_waitcnt lgkmcnt({4 - j})')
            A(f'v_mfma_f32_16x16x32_bf16 {vr(d0, 4)}, {vr(a0 + 4 * j, 4)}, {vr(b0 + 4 * j, 4)}, ' + ('0' if j == 0 else vr(d0, 4)))
        l4 = self.lab('q')
        A('s_waitcnt lgkmcnt(0)', 's_and_b32 s60, s2, 3', 's_cmp_lt_u32 s60, 2', f's_cbranch_scc0 {l4}')
        A(f'v_mfma_f32_16x16x32_bf16 {vr(d0, 4)}, {vr(a0 + 16, 4)}, {vr(b0 + 16, 4)}, {vr(d0, 4)}')
        A.label(l4)
        A(f'v_mov_b32 {vr(a0 + 1)}, {sTag}', f'v_mov_b32 {vr(a0 + 3)}, {sTag}', 's_mov_b32 s60, 0x20000', 's_nop 4')
        A(f'v_mov_b32 {vr(a0)}, {vr(d0)}', f'v_mov_b32 {vr(a0 + 2)}, {vr(d0 + 1)}', 's_mov_b64 exec, 0xffff')
        A(f'buffer_store_dwordx2 {vr(a0, 2)}, {vQw}, {WS_SRD}, 0 offen sc1', f'buffer_store_dwordx2 {vr(a0 + 2, 2)}, {vQw}, {WS_SRD}, s60 offen sc1')
        A('s_mov_b64 exec, -1')
        self.stamp(1)
        A(f's_mov_b32 {sSpin}, {self.spin}')
        l5, l6 = self.lab('hq'), self.lab('hq')
        A(f's_cmp_eq_u32 {sH}, 0', f's_cbranch_scc0 {l5}')
        for n in range(self.npre, 7):
            if n == 4:
                A(f's_add_u32 {sT}, {sT}, 131072')
            self.piece(n, track=False)
        self.setup_consts()
        self.setup_roles()
        A(f's_branch {l6}')
        A.label(l5)
        qp = T0 + 48
        A(f's_lshl_b32 s60, {sB}, 17', f's_lshl_b32 s61, {sG}, 13', 's_add_u32 s60, s60, s61', 's_lshl_b32 s61, s59, 12', 's_add_u32 s60, s60, s61')
        A(f's_add_u32 s60, s60, {QBUF}', f'v_lshrrev_b32 {vQg}, 5, {vLane}', f'v_lshlrev_b32 {vQg}, 11, {vQg}', f'v_and_b32 {vr(qp)}, 31, {vLane}')
        A(f'v_lshl_add_u32 {vQg}, {vr(qp)}, 4, {vQg}', f'v_add_u32 {vQg}, s60, {vQg}')

        def qloads():
            for k in range(4):
                A(f'buffer_load_dwordx4 {vr(qp + 4 * k, 4)}, {vQg}, {WS_SRD}, 0 offen offset:{512 * k} sc1')
        lf, li, lc = self.lab('hf'), self.lab('hi'), self.lab('hc')
        A(f's_cmp_eq_u32 {sRole}, 0', f's_cbranch_scc0 {lf}')
        self.setup_dma_t2()
        self.dma_t2(0, self.ao, 0)
        qloads()
        self.dma_t2(self.ao, self.bo, 0)
        A(f's_waitcnt vmcnt({3 * (self.bo - self.ao)})', f's_branch {lc}')
        A.label(lf)
        A(f's_cmp_eq_u32 {sRole}, 1', f's_cbranch_scc0 {li}')
        self.setup_dma_ffn()
        self.dma_w13(0, self.a13, 0)
        qloads()
        self.dma_w13(self.a13, self.b13, 0)
        A(f's_waitcnt vmcnt({2 * (self.b13 - self.a13)})', f's_branch {lc}')
        A.label(li)
        qloads()
        A('s_waitcnt vmcnt(0)')
        chk, ok = lc, self.lab('qok')
        A.label(chk)
        for k in range(8):
            A(f'v_xor_b32 {vr(qp + 16 + k)}, {sTag}, {vr(qp + 2 * k + 1)}')
        A(f'v_or3_b32 {vr(qp + 16)}, {vr(qp + 16)}, {vr(qp + 17)}, {vr(qp + 18)}', f'v_or3_b32 {vr(qp + 19)}, {vr(qp + 19)}, {vr(qp + 20)}, {vr(qp + 21)}')
        A(f'v_or3_b32 {vr(qp + 16)}, {vr(qp + 16)}, {vr(qp + 22)}, {vr(qp + 23)}', f'v_or_b32 {vr(qp + 16)}, {vr(qp + 16)}, {vr(qp + 19)}')
        A(f'v_cmp_ne_u32 vcc, 0, {vr(qp + 16)}')
        A(f's_cbranch_vccz {ok}', f's_sub_u32 {sSpin}, {sSpin}, 1', f's_cbranch_scc1 {ok}')
        qloads()
        A('s_waitcnt vmcnt(0)', f's_branch {chk}')
        A.label(ok)
        for c in range(2):
            o = qp + 2 * c
            A(f'v_add_f32 {vr(o)}, {vr(o)}, {vr(o + 4)}', f'v_add_f32 {vr(o + 8)}, {vr(o + 8)}, {vr(o + 12)}', f'v_add_f32 {vr(o)}, {vr(o)}, {vr(o + 8)}')
        A(f'v_cvt_pk_bf16_f32 {vr(qp)}, {vr(qp)}, {vr(qp + 2)}')
        A(f's_lshl_b32 s60, {sW}, 8', f's_add_u32 s60, s60, {QL - 512}', f'v_lshl_add_u32 {vr(qp + 1)}, {vLane}, 2, s60')
        A(f'ds_write_b32 {vr(qp + 1)}, {vr(qp)}', 's_waitcnt lgkmcnt(0)')
        A.label(l6)
        A('s_barrier')
        self.stamp(2)

    def setup_early(self):
        A = self.A
        t = T0 + 4
        g, r, c, j = 250, 251, 252, 253
        self.fields = (g, r, c, j)
        A(f'v_lshrrev_b32 {vr(g)}, 4, {vLane}', f'v_bfe_u32 {vr(r)}, {vLane}, 2, 2', f'v_and_b32 {vr(c)}, 3, {vLane}', f'v_and_b32 {vr(j)}, 15, {vLane}')
        A(f's_add_u32 s60, s56, {HN}', f'v_lshl_add_u32 {vHNo}, {vLane}, 3, s60')
        A(f'v_and_b32 {vr(t)}, 31, {vLane}', f's_add_u32 s60, s57, {HN}', f'v_lshl_add_u32 {vHNe}, {vr(t)}, 1, s60')
        A(f's_lshl_b32 s60, {sW}, 4', f's_add_u32 s60, s60, {STAT}', f'v_mov_b32 {vStW}, s60')
        A(f's_lshr_b32 s60, {sW}, 1', 's_lshl_b32 s60, s60, 5', f's_add_u32 s60, s60, {STAT}', f'v_mov_b32 {vStR}, s60')
        A(f'v_and_b32 {vr(t)}, 1, {vLane}', f'v_mul_u32_u24 {vr(t)}, 1152, {vr(t)}', f'v_lshl_add_u32 {vr(t)}, {vr(g)}, 4, {vr(t)}')
        A(f'v_add_u32 {vHNa}, {HN}, {vr(t)}')
        A('s_lshl_b32 s60, s58, 6', f'v_add_u32 {vr(T0 + 10)}, s60, {vHNa}')
        A(f'v_lshrrev_b32 {vr(t)}, 1, {vr(r)}', f'v_and_b32 {vr(t + 1)}, 1, {vr(g)}', f'v_lshl_or_b32 {vr(t)}, {vr(t + 1)}, 1, {vr(t)}')
        A(f'v_xor_b32 {vr(t)}, {sW}, {vr(t)}', f'v_lshlrev_b32 {vr(t)}, 5, {vr(t)}', f'v_lshl_add_u32 {vr(t)}, {vr(c)}, 3, {vr(t)}')
        A(f'v_lshl_add_u32 {vr(t + 1)}, {vr(g)}, 3, {vr(r)}', f'v_lshl_add_u32 {vr(T0 + 11)}, {vr(t + 1)}, 7, {vr(t)}')
        A('s_lshl_b32 s60, s2, 9', f's_lshl_b32 s61, {sW}, 7', 's_add_u32 s60, s60, s61', f's_add_u32 s60, s60, {QBUF}', f'v_lshl_add_u32 {vQw}, {vr(j)}, 3, s60')
        A(f's_lshl_b32 s60, {sS}, 2', 's_add_u32 s60, s60, s55', 's_and_b32 s60, s60, 31')
        lr = self.lab('role')
        A(f's_mov_b32 {sRole}, 0', f's_mov_b32 {sN}, s60', f's_mov_b32 {sGF}, {sS}', 's_cmp_lt_u32 s60, 12', f's_cbranch_scc1 {lr}')
        A(f's_mov_b32 {sRole}, 1', f's_mul_i32 {sGF}, {sS}, 18', f's_add_u32 {sGF}, {sGF}, s60', f's_sub_u32 {sGF}, {sGF}, 12')
        A('s_cmp_lt_u32 s60, 30', f's_cbranch_scc1 {lr}', f's_mov_b32 {sRole}, 2')
        A.label(lr)
        A(f's_lshl_b32 s60, {sG}, 1', 's_add_u32 s60, s60, s59', f's_lshl_b32 s61, {sB}, 3', f's_add_u32 s61, s61, {sS}')
        A('s_lshl_b32 s62, s60, 12', 's_lshl_b32 s63, s61, 8', 's_add_u32 s62, s62, s63', f's_add_u32 s62, s62, {OBUF}')
        A(f'v_lshl_add_u32 {vOad}, {vLane}, 2, s62')
        A('s_lshl_b32 s62, s60, 4', 's_add_u32 s62, s62, s61', f's_mul_i32 s62, s62, {self.sstr}', f's_add_u32 s62, s62, {SBUF}')
        A(f'v_mov_b32 {vSad}, s62')
        A('s_lshl_b32 s60, s55, 8', f's_add_u32 s60, s60, {CNT}', f'v_mov_b32 {vCa}, s60')
        A(f'v_mov_b32 {vr(t)}, {CTR}', f'v_mov_b32 {vr(t + 1)}, 0', f'ds_write_b32 {vr(t)}, {vr(t + 1)}')

    def prefill(self, again=False):
        A = self.A
        t = T0
        l0, l1, l2 = self.lab('pf'), self.lab('pf'), self.lab('pf')
        A(f's_cmp_eq_u32 {sH}, 0', f's_cbranch_scc1 {l2}')
        for k in range(4):
            A(f'v_mov_b32 {vr(t + 4 + k)}, -1')
        A(f'buffer_store_dword {vr(t + 4)}, {vOad}, {WS_SRD}, 0 offen sc1')
        A(f'buffer_store_dwordx2 {vr(t + 4, 2)}, {vSad}, {WS_SRD}, 0 offen sc1')
        if not again:
            A(f's_or_b32 s60, {sS}, s59', 's_cmp_eq_u32 s60, 0', f's_cbranch_scc0 {l0}')
            A(f'buffer_store_dword {vr(t + 3)}, {vCa}, {WS_SRD}, 0 offen sc1')
            A.label(l0)
        A(f's_cmp_eq_u32 {sRole}, 0', f's_cbranch_scc0 {l1}')
        A(f's_mul_i32 s60, {sGF}, 4608', 's_mul_i32 s61, s59, 2304', 's_add_u32 s60, s60, s61', f's_mul_i32 s61, {sN}, 192')
        A('s_add_u32 s60, s60, s61', f's_add_u32 s60, s60, {ABUF}', f'v_lshlrev_b32 {vr(t + 9)}, 2, {vLane}')
        A('s_mov_b32 exec_hi, 0xffff')
        A(f'buffer_store_dword {vr(t + 4)}, {vr(t + 9)}, {WS_SRD}, s60 offen sc1')
        A('s_mov_b64 exec, -1')
        A.label(l1)
        A(f's_cmp_eq_u32 {sRole}, 1', f's_cbranch_scc0 {l2}')
        A(f's_lshl_b32 s60, {sGF}, 7', f's_mul_i32 s61, s59, {18 * 18432}', 's_add_u32 s60, s60, s61', f's_add_u32 s60, s60, {FBUF}')
        A(f'v_lshrrev_b32 {vr(t + 9)}, 3, {vLane}', f'v_mul_u32_u24 {vr(t + 9)}, 18432, {vr(t + 9)}', f'v_and_b32 {vr(t + 2)}, 7, {vLane}', f'v_lshl_add_u32 {vr(t + 9)}, {vr(t + 2)}, 4, {vr(t + 9)}')
        for k in range(3):
            if k == 2:
                A('s_mov_b64 exec, 0xffff')
            A(f'buffer_store_dwordx4 {vr(t + 4, 4)}, {vr(t + 9)}, {WS_SRD}, s60 offen sc1', f's_add_u32 s60, s60, {8 * 18432}')
        A('s_mov_b64 exec, -1')
        A.label(l2)

    def setup_consts(self):
        A = self.A
        t = T0 + 4
        A(f's_mov_b32 {sScale}, {f2u(128 ** -0.5):#x}', f's_mov_b32 {sL2e}, {f2u(1.4426950408889634):#x}')
        for m, v in ((40, 0x22222222), (42, 0x44444444), (44, 0x88888888), (74, 0xff00ff00)):
            A(f's_mov_b32 s{m}, {v:#x}', f's_mov_b32 s{m + 1}, {v:#x}')
        A('s_mov_b32 s72, 0', 's_mov_b32 s73, -1')
        A(f'v_mov_b32 {vM}, 0xff800000', f'v_mov_b32 {vL}, 0')
        for r in range(4):
            A(f'v_mov_b32 {vr(ACC + r)}, 0')
        A(f'v_bfe_u32 {vr(t)}, {vLane}, 3, 1', f'v_mul_u32_u24 {vr(t)}, 0x202, {vr(t)}', f'v_add_u32 {vr(t)}, 0x100, {vr(t)}')
        A(f'v_or_b32 {vr(t + 1)}, 0x0c0c0000, {vr(t)}', f'v_lshlrev_b32 {vr(t)}, 16, {vr(t)}', f'v_or_b32 {vr(t)}, 0x0c0c, {vr(t)}')
        A(f'v_and_b32 {vr(t + 2)}, 1, {vLane}', f'v_cmp_eq_u32 vcc, 1, {vr(t + 2)}', f'v_cndmask_b32 {vr(t)}, {vr(t + 1)}, {vr(t)}, vcc')
        A(f'v_bfe_u32 {vr(t + 1)}, {vLane}, 1, 2', f'v_mov_b32 {vr(t + 2)}, 0x0c0c0c0c')
        for d in range(4):
            A(f'v_cmp_eq_u32 vcc, {d}, {vr(t + 1)}', f'v_cndmask_b32 {vr(SEL + d)}, {vr(t + 2)}, {vr(t)}, vcc')
        g, r, c, j = self.fields
        A(f'v_and_b32 {vr(t)}, 1, {vr(r)}', f'v_lshlrev_b32 {vr(t)}, 8, {vr(t)}', f'v_lshl_add_u32 {vr(t)}, {vr(g)}, 6, {vr(t)}')
        A(f'v_lshl_add_u32 {vr(t)}, {vr(c)}, 4, {vr(t)}', f'v_add_u32 {vQr}, {QL}, {vr(t)}')
        A(f'v_lshrrev_b32 {vr(t)}, 1, {vr(g)}', f'v_lshlrev_b32 {vr(t + 1)}, 9, {vr(t)}', f'v_lshl_add_u32 {vr(t + 1)}, {vr(j)}, 5, {vr(t + 1)}')
        A(f'v_and_b32 {vr(t + 2)}, 1, {vr(g)}', f'v_lshl_add_u32 {vr(t + 1)}, {vr(t + 2)}, 4, {vr(t + 1)}')
        A(f's_lshl_b32 s60, {sW}, 10', f's_add_u32 s60, s60, {CMB}', f'v_add_u32 {vCmbW}, s60, {vr(t + 1)}')
        A(f'v_lshlrev_b32 {vr(t)}, 3, {vr(t)}', f'v_add_u32 {vMstR}, {MST}, {vr(t)}')
        A(f's_lshl_b32 s60, {sW}, 4', f'v_add_u32 {vMstO}, s60, {vMstR}')
        A(f'v_bfe_u32 {vr(t)}, {vLane}, 2, 1', f'v_lshlrev_b32 {vr(t)}, 3, {vr(t)}', f's_add_u32 s60, s60, {MST}', f'v_add_u32 {vMstW}, s60, {vr(t)}')
        A(f'v_lshlrev_b32 {vr(t)}, 7, {vr(g)}', f'v_bfe_u32 {vr(t + 1)}, {vLane}, 1, 1', f'v_lshl_add_u32 {vr(t)}, {vr(t + 1)}, 6, {vr(t)}')
        A(f'v_lshl_add_u32 {vr(t)}, {vr(r)}, 4, {vr(t)}', f'v_and_b32 {vr(t + 1)}, 1, {vLane}', f'v_lshl_add_u32 {vr(t)}, {vr(t + 1)}, 3, {vr(t)}')
        A('s_lshl_b32 s60, s59, 9', f's_add_u32 s60, s60, {CMB}', f'v_add_u32 {vCmbR}, s60, {vr(t)}')

    def setup_dma_t2(self):
        A = self.A
        t = T0 + 4
        A('s_mov_b32 s20, s94', 's_mov_b32 s21, s95', f's_mov_b32 s22, {4096 * 1152}', 's_mov_b32 s23, 0x20000')
        for i in range(3):
            A(f'v_add_u32 {vr(t)}, {64 * i}, {vLane}', f'v_mul_u32_u24 {vr(t + 1)}, 171, {vr(t)}', f'v_lshrrev_b32 {vr(t + 1)}, 10, {vr(t + 1)}')
            A(f'v_mul_u32_u24 {vr(t + 2)}, 1056, {vr(t + 1)}', f'v_lshl_add_u32 {vr(RA + i)}, {vr(t)}, 4, {vr(t + 2)}')
        A(f's_lshl_b32 s61, {sGF}, 2', 's_lshl_b32 s62, s59, 1', 's_add_u32 s61, s61, s62')
        A(f's_mul_i32 s77, s61, {128 * 1152}', f's_mul_i32 s60, {sN}, 96', 's_add_u32 s77, s77, s60')
        A('s_mul_i32 s78, s59, 24576')

    def setup_dma_ffn(self):
        A = self.A
        g, r, c, j = self.fields
        t = T0 + 4
        A('s_mov_b32 s20, s96', 's_mov_b32 s21, s97', 's_mov_b32 s64, s98', 's_mov_b32 s65, s99')
        A(f's_mov_b32 s22, {576 * 9216}', 's_mov_b32 s23, 0x20000', f's_mov_b32 s66, {576 * 9216}', 's_mov_b32 s67, 0x20000')
        A('s_lshl_b32 s60, s59, 4', f'v_lshrrev_b32 {vr(t)}, 2, {vLane}', f'v_add_u32 {vr(t)}, s60, {vr(t)}')
        A(f'v_bfe_u32 {vr(t + 1)}, {vr(t)}, 3, 1', f'v_xor_b32 {vr(t + 1)}, {vr(c)}, {vr(t + 1)}', f'v_mul_u32_u24 {vr(t)}, 9216, {vr(t)}')
        A(f'v_lshl_add_u32 {vr(HA)}, {vr(t + 1)}, 4, {vr(t)}', f'v_xor_b32 {vr(HA + 1)}, 32, {vr(HA)}')
        A(f's_lshl_b32 s77, {sGF}, 6', 's_lshl_b32 s78, s59, 10')

    def setup_w2(self):
        A = self.A
        t = T0 + 4
        A('s_mul_i32 s60, s59, 1152')
        for i in range(18):
            A(f's_add_u32 s61, s60, {64 * i}', f'v_add_u32 {vr(t)}, s61, {vLane}')
            A(f'v_mul_u32_u24 {vr(t + 1)}, 14564, {vr(t)}', f'v_lshrrev_b32 {vr(t + 1)}, 20, {vr(t + 1)}')
            A(f'v_and_b32 {vr(t + 2)}, 2, {vr(t + 1)}', f'v_bfe_u32 {vr(t + 1)}, {vr(t + 1)}, 3, 1', f'v_lshl_or_b32 {vr(t + 1)}, {vr(t + 1)}, 2, {vr(t + 2)}')
            A(f'v_xor_b32 {vr(t)}, {vr(t)}, {vr(t + 1)}', f'v_lshlrev_b32 {vr(HA + 2 + i)}, 4, {vr(t)}')

    def setup_roles(self):
        A = self.A
        g, r, c, j = self.fields
        t = T0 + 4
        lf, le = self.lab('rf'), self.lab('re')
        A(f's_cmp_eq_u32 {sRole}, 0', f's_cbranch_scc0 {lf}')
        A(f'v_lshl_add_u32 {vr(t)}, {vr(g)}, 2, {vr(r)}', f'v_mul_u32_u24 {vr(t)}, 96, {vr(t)}', f'v_lshl_add_u32 {vr(t)}, {vr(c)}, 3, {vr(t)}')
        A(f's_mul_i32 s60, {sW}, 12288', f'v_add_u32 {vr(RA + 3)}, s60, {vr(t)}')
        A(f's_lshl_b32 s61, {sGF}, 2', f's_add_u32 s61, s61, {sW}')
        A(f'v_lshlrev_b32 {vr(t)}, 8, {vr(j)}', f'v_lshl_add_u32 {vr(t)}, {vr(g)}, 4, {vr(t)}')
        A('s_lshl_b32 s60, s61, 12', f's_add_u32 s60, s60, {OBUF}', f'v_add_u32 {vr(RA + 4)}, s60, {vr(t)}')
        A(f'v_lshl_add_u32 {vr(t)}, {vr(g)}, 2, {vr(j)}', f'v_and_b32 {vr(t)}, 7, {vr(t)}', f'v_lshrrev_b32 {vr(t + 1)}, 1, {vr(g)}')
        A(f'v_lshl_add_u32 {vr(t)}, {vr(t + 1)}, 3, {vr(t)}', f's_mul_i32 s60, s61, {16 * self.sstr}', f's_add_u32 s60, s60, {SBUF}', f'v_mad_u32_u24 {vr(RA + 5)}, {vr(t)}, {self.sstr // 2}, 0', f'v_lshl_add_u32 {vr(RA + 5)}, {vr(RA + 5)}, 1, s60')
        A(f'v_mul_u32_u24 {vr(t)}, 192, {vr(t + 1)}', f'v_lshl_add_u32 {vr(t)}, {vr(j)}, 2, {vr(t)}')
        A(f's_mul_i32 s60, {sW}, 384', f's_add_u32 s60, s60, {RED}', f'v_add_u32 {vr(t)}, s60, {vr(t)}', f'v_add_u32 {vr(RA + 7)}, 128, {vr(t)}')
        A(f'v_and_b32 {vr(t + 1)}, 1, {vr(g)}', f'v_lshl_add_u32 {vr(RA + 6)}, {vr(t + 1)}, 6, {vr(t)}')
        A(f's_mul_i32 s60, {sW}, 192', f's_add_u32 s60, s60, {RED}', f'v_lshl_add_u32 {vr(RA + 8)}, {vLane}, 2, s60')
        A(f's_mul_i32 s60, {sGF}, 4608', f's_mul_i32 s62, {sW}, 2304', 's_add_u32 s60, s60, s62', f's_mul_i32 s62, {sN}, 192')
        A('s_add_u32 s60, s60, s62', f's_add_u32 s60, s60, {ABUF}', f'v_lshl_add_u32 {vr(RA + 9)}, {vLane}, 2, s60')
        A(f's_mul_i32 s60, {sGF}, 9', f's_add_u32 s60, s60, {sN}', 's_and_b32 s61, s60, 1', 's_lshr_b32 s60, s60, 1', 's_min_u32 s60, s60, 35')
        A('s_mul_i32 s76, s61, 576', 's_lshl_b32 s62, s60, 4', 's_add_u32 s76, s76, s62')
        A(f'v_and_b32 {vr(t)}, 7, {vLane}', f'v_mul_u32_u24 {vr(t + 1)}, 4608, {vr(t)}', f'v_bfe_u32 {vr(t + 2)}, {vLane}, 3, 2', f'v_lshl_add_u32 {vr(t + 1)}, {vr(t + 2)}, 4, {vr(t + 1)}')
        A('s_lshl_b32 s62, s76, 2', f's_add_u32 s62, s62, {ABUF}', f'v_add_u32 {vr(RA + 10)}, s62, {vr(t + 1)}')
        A(f'v_lshlrev_b32 {vr(RA + 14)}, 4, {vr(t + 2)}', f'v_add_u32 {vr(RA + 14)}, {HRES}, {vr(RA + 14)}')
        A('s_lshl_b32 s62, s76, 1', f'v_lshl_add_u32 {vr(RA + 12)}, {vr(t + 2)}, 3, s62', f'v_lshl_add_u32 {vr(RA + 17)}, {vr(j)}, 1, s62')
        A('s_mul_i32 s62, s60, 43', 's_lshr_b32 s62, s62, 7', f'v_mul_u32_u24 {vr(t)}, 12, {vr(t)}', f'v_add_u32 {vr(t)}, s62, {vr(t)}')
        A(f's_lshl_b32 s62, {sS}, 14', f's_add_u32 s62, s62, {FLAG2}', f'v_lshl_add_u32 {vr(RA + 13)}, {vr(t)}, 7, s62')
        A('s_mul_i32 s60, s60, 18432', 's_lshl_b32 s61, s61, 6', 's_add_u32 s60, s60, s61', f's_mul_i32 s61, {sW}, {36 * 128}', 's_add_u32 s60, s60, s61')
        A(f's_add_u32 s60, s60, {FBUF}', f'v_lshlrev_b32 {vr(t)}, 7, {vr(g)}', f'v_lshl_add_u32 {vr(t)}, {vr(r)}, 7, 0', f'v_lshl_add_u32 {vr(t)}, {vr(g)}, 9, {vr(t)}')
        A(f'v_lshl_add_u32 {vr(t)}, {vr(c)}, 4, {vr(t)}', f'v_add_u32 {vr(RA + 11)}, s60, {vr(t)}')
        A(f's_lshl_b32 s60, {sW}, 8', f's_add_u32 s60, s60, {FIN}', f'v_lshlrev_b32 {vr(t)}, 6, {vr(g)}', f'v_lshl_add_u32 {vr(t)}, {vr(c)}, 4, {vr(t)}', f'v_add_u32 {vr(RA + 15)}, s60, {vr(t)}')
        A(f'v_lshlrev_b32 {vr(t)}, 8, {vr(g)}', f'v_lshl_add_u32 {vr(t)}, {vr(j)}, 2, {vr(t)}', f'v_add_u32 {vr(RA + 16)}, {FIN}, {vr(t)}')
        A(f's_mul_i32 s60, {sGF}, 12', f's_add_u32 s60, s60, {sN}', 's_lshl_b32 s60, s60, 7', f's_add_u32 s60, s60, {FLAG2}', f'v_lshl_add_u32 {vr(RA + 18)}, {vLane}, 14, s60')
        A(f's_branch {le}')
        A.label(lf)
        A(f's_cmp_eq_u32 {sRole}, 1', f's_cbranch_scc0 {le}')
        A(f'v_and_b32 {vr(t)}, 1, {vr(g)}', f'v_and_b32 {vr(t + 1)}, 2, {vr(c)}', f'v_or_b32 {vr(t)}, {vr(t)}, {vr(t + 1)}', f'v_xor_b32 {vr(t)}, {sW}, {vr(t)}')
        A(f'v_lshlrev_b32 {vr(t)}, 4, {vr(t)}', f'v_lshl_add_u32 {vr(t)}, {vr(t + 1)}, 10, {vr(t)}', f'v_and_b32 {vr(t + 1)}, 1, {vr(c)}')
        A(f'v_lshl_add_u32 {vr(t)}, {vr(t + 1)}, 3, {vr(t)}', f'v_lshl_add_u32 {vr(t + 1)}, {vr(g)}, 3, {vr(r)}')
        A(f'v_lshl_add_u32 {vr(RA + 10)}, {vr(t + 1)}, 6, {vr(t)}', f'v_add_u32 {vr(RA + 11)}, 36864, {vr(RA + 10)}')
        A(f'v_mul_u32_u24 {vr(t + 1)}, 1152, {vr(t + 1)}', f'v_lshl_add_u32 {vr(t + 1)}, {vr(c)}, 3, {vr(t + 1)}', f'v_add_u32 {vr(t + 1)}, {LW2}, {vr(t + 1)}')
        A(f'v_lshrrev_b32 {vr(t)}, 1, {vr(r)}', f'v_and_b32 {vr(t + 2)}, 1, {vr(g)}', f'v_lshl_or_b32 {vr(t)}, {vr(t + 2)}, 1, {vr(t)}')
        A(f's_mul_i32 s60, {sW}, 9')
        for m in range(4):
            A(f's_add_u32 s61, s60, {m}', f'v_xor_b32 {vr(t + 2)}, s61, {vr(t)}', f'v_lshl_add_u32 {vr(RA + 12 + m)}, {vr(t + 2)}, 5, {vr(t + 1)}')
        A(f's_lshr_b32 s60, {sW}, 1', 's_mul_i32 s60, s60, 2304', f's_and_b32 s61, {sW}, 1', 's_lshl_b32 s62, s61, 10', 's_add_u32 s62, s62, s60')
        A(f's_add_u32 s62, s62, {ABUF}', f'v_lshl_add_u32 {vr(RA + 16)}, {vLane}, 4, s62')
        A('s_lshl_b32 s62, s61, 7', 's_add_u32 s62, s62, s60', f's_add_u32 s62, s62, {ABUF + 2048}')
        A(f'v_and_b32 {vr(t)}, 31, {vLane}', f'v_lshl_add_u32 {vr(RA + 17)}, {vr(t)}, 2, s62')
        A(f'v_and_b32 {vr(t)}, 7, {vLane}', 's_mul_i32 s62, s61, 5', f'v_add_u32 {vr(t + 1)}, s62, {vr(t)}', f'v_min_u32 {vr(t + 1)}, 11, {vr(t + 1)}')
        A(f'v_add_u32 {vr(t + 2)}, 4, {vr(t)}', f'v_cmp_lt_u32 vcc, 5, {vr(t)}', 's_cmp_eq_u32 s61, 0', 's_cselect_b64 vcc, vcc, 0', f'v_cndmask_b32 {vr(t + 1)}, {vr(t + 1)}, {vr(t + 2)}, vcc')
        A(f'v_lshrrev_b32 {vr(t)}, 3, {vLane}', f'v_mul_u32_u24 {vr(t)}, 12, {vr(t)}', f'v_add_u32 {vr(t)}, {vr(t)}, {vr(t + 1)}')
        A(f's_lshl_b32 s62, {sS}, 14', f's_add_u32 s62, s62, {FLAG2}', f'v_lshl_add_u32 {vr(RA + 21)}, {vr(t)}, 7, s62')
        A(f'v_bfe_u32 {vr(t)}, {vLane}, 3, 1', f'v_lshlrev_b32 {vr(t)}, 6, {vr(t)}', f'v_and_b32 {vr(t + 1)}, 7, {vLane}', f'v_lshl_add_u32 {vr(t)}, {vr(t + 1)}, 1, {vr(t)}')
        A(f's_lshl_b32 s60, {sW}, 4', f's_add_u32 s60, s60, {HH}', f'v_add_u32 {vr(RA + 18)}, s60, {vr(t)}')
        A(f'v_and_b32 {vr(t)}, 1, {vLane}', f'v_lshlrev_b32 {vr(t + 1)}, 6, {vr(t)}', f'v_lshl_add_u32 {vr(t + 1)}, {vr(g)}, 4, {vr(t + 1)}', f'v_add_u32 {vr(RA + 19)}, {HH}, {vr(t + 1)}')
        A(f'v_lshlrev_b32 {vr(t)}, 6, {vr(t)}', f'v_lshl_add_u32 {vr(t)}, {vr(g)}, 4, {vr(t)}')
        A(f's_mul_i32 s60, {sW}, {9 * 18432}', f's_lshl_b32 s61, {sGF}, 7', 's_add_u32 s60, s60, s61', f's_add_u32 s60, s60, {FBUF}', f'v_add_u32 {vr(RA + 20)}, s60, {vr(t)}')
        A(f's_mul_i32 s79, {sGF}, 36864')
        A('s_mul_i32 s76, s59, 18432', f's_add_u32 s76, s76, {LW2}')
        A.label(le)

    def dma_t2(self, lo, hi, pace):
        A = self.A
        for grp in range(lo, hi):
            for i in range(3):
                A('s_mov_b32 m0, s78')
                A(f'buffer_load_dwordx4 {vr(RA + i)}, {WA_SRD}, s77 offen {self.wpol} lds')
                A('s_add_u32 s78, s78, 1024')
            A('s_add_u32 s77, s77, 36864')
            if pace:
                A(f's_waitcnt vmcnt({pace})')

    def dma_w13(self, lo, hi, pace):
        A = self.A
        for ks in range(lo, hi):
            A('s_mov_b32 m0, s78', 's_add_u32 s60, s78, 2048')
            A(f'buffer_load_dwordx4 {vr(HA)}, {WA_SRD}, s77 offen {self.wpol} lds')
            A('s_mov_b32 m0, s60', 's_add_u32 s78, s78, 4096')
            A(f'buffer_load_dwordx4 {vr(HA + 1)}, {W3_SRD}, s77 offen {self.wpol} lds')
            A(f's_add_u32 s77, s77, {32 * 9216}')
            if pace:
                A(f's_waitcnt vmcnt({pace})')

    def dma_w2(self, lo, hi, pace):
        A = self.A
        for i in range(lo, hi):
            A('s_mov_b32 m0, s76')
            A(f'buffer_load_dwordx4 {vr(HA + 2 + i)}, {W2_SRD}, s79 offen {self.wpol} lds')
            A('s_add_u32 s76, s76, 1024')
            if pace and i % 2:
                A(f's_waitcnt vmcnt({pace})')

    def helper(self):
        A = self.A
        A.label('L_help')
        self.setup_consts()
        self.setup_roles()
        lf, le = self.lab('hf'), self.lab('he')
        A(f's_cmp_eq_u32 {sRole}, 0', f's_cbranch_scc0 {lf}')
        self.dma_t2(self.bo, self.eo, self.pace)
        A(f's_branch {le}')
        A.label(lf)
        A(f's_cmp_eq_u32 {sRole}, 1', f's_cbranch_scc0 {le}')
        self.setup_w2()
        self.dma_w13(self.b13, self.e13, self.pace)
        self.dma_w2(0, self.e2, self.pace)
        A.label(le)
        chk, ok = self.lab('ev'), self.lab('evok')
        t = T0
        A('s_lshl_b32 s60, s59, 16', f's_add_u32 s60, s60, {QBUF + 4}', f'v_lshl_add_u32 {vr(t)}, {vLane}, 10, s60')
        A(f's_mov_b32 {sSpin}, {self.spin}')
        A.label(chk)
        A(f'buffer_load_dword {vr(t + 5)}, {vr(t)}, {WS_SRD}, 0 offen sc1', f'buffer_load_dword {vr(t + 7)}, {vr(t)}, {WS_SRD}, 0 offen offset:512 sc1', 's_waitcnt vmcnt(0)')
        A(f'v_xor_b32 {vr(t + 5)}, {sTag}, {vr(t + 5)}', f'v_xor_b32 {vr(t + 7)}, {sTag}, {vr(t + 7)}', f'v_or_b32 {vr(t + 5)}, {vr(t + 5)}, {vr(t + 7)}')
        A(f'v_cmp_ne_u32 vcc, 0, {vr(t + 5)}')
        self.spin_end(chk, ok)
        A.label(ok)
        self.stamp(3)
        if self.repf:
            A('s_barrier')
            self.prefill(again=True)
            A('s_waitcnt vmcnt(0)')
        A('s_barrier')
        self.merge_stats(T0)
        A('s_lshl_b32 s60, s59, 5', 's_lshl_b64 exec, 1, s60')
        A(f'buffer_store_dwordx2 {vr(T0 + 10, 2)}, {vSad}, {WS_SRD}, 0 offen sc1')
        A('s_mov_b64 exec, -1', 's_barrier')
        self.stamp(4)
        for w in range(2):
            A(f'ds_read_b64 {vr(t + 2 * w, 2)}, {vCmbR} offset:{1024 * w}')
        A('s_waitcnt lgkmcnt(0)', f'v_pk_add_f32 {vr(t, 2)}, {vr(t, 2)}, {vr(t + 2, 2)}', f'v_cvt_pk_bf16_f32 {vr(t)}, {vr(t)}, {vr(t + 1)}')
        A(f'buffer_store_dword {vr(t)}, {vOad}, {WS_SRD}, 0 offen sc1')
        lf, le = self.lab('hf'), 'L_tail'
        A(f's_cmp_eq_u32 {sRole}, 0', f's_cbranch_scc0 {lf}')
        self.dma_t2(self.eo, 8, 0)
        A(f's_branch {le}')
        A.label(lf)
        A(f's_cmp_eq_u32 {sRole}, 1', f's_cbranch_scc0 {le}')
        self.dma_w13(self.e13, 18, 0)
        self.dma_w2(self.e2, 18, 0)
        A(f's_branch {le}')

    def merge_stats(self, t):
        A = self.A
        for w in range(2):
            A(f'ds_read_b64 {vr(t + 2 * w, 2)}, {vMstR} offset:{16 * w}')
        A('s_waitcnt lgkmcnt(0)')
        mx, ls = t + 10, t + 11
        A(f'v_max_f32 {vr(mx)}, {vr(t)}, {vr(t + 2)}')
        A(f'v_sub_f32 {vr(t)}, {vr(t)}, {vr(mx)}', f'v_sub_f32 {vr(t + 2)}, {vr(t + 2)}, {vr(mx)}')
        A(f'v_mul_f32 {vr(t)}, {sL2e}, {vr(t)}', f'v_mul_f32 {vr(t + 2)}, {sL2e}, {vr(t + 2)}')
        A(f'v_exp_f32 {vr(t)}, {vr(t)}', f'v_exp_f32 {vr(t + 2)}, {vr(t + 2)}')
        A(f'v_mul_f32 {vr(ls)}, {vr(t)}, {vr(t + 1)}', f'v_fmac_f32 {vr(ls)}, {vr(t + 2)}, {vr(t + 3)}')

    def tile_start(self, par):
        A, NS = self.A, self.NS
        ls, lc, ln = self.lab('ts'), self.lab('tc'), self.lab('tn')
        A(f's_cmp_lt_u32 {sIt}, {NS}', f's_cbranch_scc1 {ls}')
        A(f'v_readfirstlane_b32 s48, {vC}', f's_cmp_ge_u32 s48, {1024 - 16 * NS}', f's_cbranch_scc1 L_drain{par}')
        A('s_lshl_b32 s48, s48, 13', f's_add_u32 {sT}, {sPool}, s48', f's_branch {lc}')
        A.label(ls)
        A(f's_add_u32 {sT}, {sT}, 131072', f's_cmp_lt_u32 {sIt}, {NS - 1}', f's_cbranch_scc1 {ln}')
        if self.repf:
            A('s_barrier')
        A.label(lc)
        A(f'v_mov_b32 {vC}, 1', 's_mov_b64 exec, 1')
        A(f'buffer_atomic_add {vC}, {vCa}, {WS_SRD}, 0 offen sc0')
        A('s_mov_b64 exec, -1')
        A.label(ln)
        A(f's_add_u32 {sIt}, {sIt}, 1')

    def stream(self):
        A, W, L = self.A, self.W, self.L
        qp = T0 + 48
        A(f's_cmp_eq_u32 {sH}, 0', 's_cbranch_scc0 L_help')
        A(f'ds_read_b128 {vr(qp, 4)}, {vQr}', 's_waitcnt lgkmcnt(0)')
        for k in range(4):
            A(f'v_cndmask_b32 {vr(BQ + k)}, {vr(qp + k)}, 0, {mPar}', f'v_cndmask_b32 {vr(BQ + 4 + k)}, 0, {vr(qp + k)}, {mPar}')
        A(f's_waitcnt vmcnt({4 * (W - 1)})')
        self.piece(7, track=False)
        for n in range(0, 8 - L):
            self.consume(n)
        A(f's_mov_b32 {sIt}, 2')
        A.label('L_loop')
        l2 = self.lab('it')
        A(f's_cmp_eq_u32 {sIt}, {self.late_pf}', f's_cbranch_scc0 {l2}')
        A(f'global_load_dword v255, {vPf}, {sPC}')
        A.label(l2)
        for n in range(8, 16):
            A(f's_waitcnt vmcnt({4 * (W - 1)})')
            if n % 4 == 0:
                self.tile_start((n // 4) & 1)
            self.piece(n, track=False)
            self.consume(n - L)
        A('s_branch L_loop')
        for par in range(2):
            A.label(f'L_drain{par}')
            self.stamp(3)
            n0 = 8 + 4 * par
            for n in range(n0 - L, n0 - 2):
                if n > n0 - W:
                    A(f's_waitcnt vmcnt({4 * (n0 - 1 - n)})')
                self.consume(n)
            t = T0
            for c in ('quad_perm:[1,0,3,2]', 'quad_perm:[2,3,0,1]', 'row_ror:8'):
                A(f'v_add_f32_dpp {vL}, {vL}, {vL} ' + dpp(c))
            A(f'v_mov_b32 {vr(t)}, {vL}', f'v_permlane16_swap_b32 {vL}, {vr(t)}', f'v_add_f32 {vL}, {vL}, {vr(t)}')
            A(f'v_mov_b32 {vr(t)}, {vL}', f'v_permlane32_swap_b32 {vL}, {vr(t)}', f'v_add_f32 {vL}, {vL}, {vr(t)}')
            A('s_mov_b64 exec, 0x11', f'ds_write_b64 {vMstW}, v[18:19]', 's_mov_b64 exec, -1', 's_waitcnt lgkmcnt(0)', 's_barrier')
            self.merge_stats(t)
            A(f'v_rcp_f32 {vr(t + 8)}, {vr(t + 11)}', f's_cmp_eq_u32 {sW}, 0', 's_cselect_b64 vcc, -1, 0')
            A(f'v_cndmask_b32 {vr(t)}, {vr(t + 2)}, {vr(t)}, vcc', f'v_mul_f32 {vr(t + 8)}, {vr(t + 8)}, {vr(t)}')
            A('s_waitcnt vmcnt(4)')
            self.consume(n0 - 2)
            A('s_waitcnt vmcnt(0)')
            self.consume(n0 - 1)
            if par == 0:
                A('s_branch L_join')
        A.label('L_join')
        self.stamp(4)
        for r in range(4):
            A(f'v_mul_f32 {vr(ACC + r)}, {vr(ACC + r)}, {vr(T0 + 8)}')
        A(f'ds_write_b128 {vCmbW}, {vr(ACC, 4)}', 's_waitcnt lgkmcnt(0)', 's_barrier')

    def role_t2(self):
        A = self.A
        a, st = T0, T0 + 16

        def loads(stats=True):
            for ks in range(4):
                A(f'buffer_load_dwordx4 {vr(a + 4 * ks, 4)}, {vr(RA + 4)}, {WS_SRD}, 0 offen offset:{64 * ks} sc1')
            if stats:
                A(f'buffer_load_dwordx2 {vr(st, 2)}, {vr(RA + 5)}, {WS_SRD}, 0 offen sc1')
        xr = T0 + 60
        A(f'buffer_load_dwordx2 {vr(xr, 2)}, {vr(RA + 12)}, {X_SRD}, 0 offen')
        if self.e1s:
            A(f'buffer_load_dwordx2 {vr(st, 2)}, {vr(RA + 5)}, {WS_SRD}, 0 offen sc1')
            A('s_waitcnt vmcnt(2)', 's_barrier')
        else:
            loads()
            A('s_waitcnt vmcnt(6)', 's_barrier')
        for ks in range(4):
            for tau in range(3):
                for u in range(2):
                    A(f'ds_read_b64_tr_b16 {ar(128 + 4 * (3 * ks + tau) + 2 * u, 2)}, {vr(RA + 3)} offset:{ks * 3072 + u * 1536 + tau * 32}')
        if self.e1s:
            chk, ok = self.lab('e0'), self.lab('e0ok')
            A(f's_mov_b32 {sSpin}, {self.spin}')
            A.label(chk)
            A('s_waitcnt vmcnt(0)', f'v_max_u32 {vr(T0 + 18)}, {vr(st)}, {vr(st + 1)}', f'v_cmp_eq_u32 vcc, -1, {vr(T0 + 18)}')
            A(f's_cbranch_vccz {ok}', f's_sub_u32 {sSpin}, {sSpin}, 1', f's_cbranch_scc1 {ok}')
            A(f'buffer_load_dwordx2 {vr(st, 2)}, {vr(RA + 5)}, {WS_SRD}, 0 offen sc1', f's_branch {chk}')
            A.label(ok)
            loads(False)
        chk, ok = self.lab('e1'), self.lab('e1ok')
        A(f's_mov_b32 {sSpin}, {self.spin}')
        A.label(chk)
        A('s_waitcnt vmcnt(0)')
        m = T0 + 18
        for k in range(6):
            A(f'v_max3_u32 {vr(m + k)}, {vr(a + 3 * k)}, {vr(a + 3 * k + 1)}, {vr(a + 3 * k + 2)}')
        A(f'v_max3_u32 {vr(m)}, {vr(m)}, {vr(m + 1)}, {vr(m + 2)}', f'v_max3_u32 {vr(m + 3)}, {vr(m + 3)}, {vr(m + 4)}, {vr(m + 5)}', f'v_max_u32 {vr(m)}, {vr(m)}, {vr(m + 3)}')
        A(f'v_cmp_eq_u32 vcc, -1, {vr(m)}')
        A(f's_cbranch_vccz {ok}', f's_sub_u32 {sSpin}, {sSpin}, 1', f's_cbranch_scc1 {ok}')
        if self.sl1:
            A(f's_sleep {self.sl1}')
        loads(not self.e1s)
        A(f's_branch {chk}')
        A.label(ok)
        self.stamp(6)
        A(f'v_mov_b32 {vr(T0 + 38)}, {CTR}', f'v_mov_b32 {vr(T0 + 39)}, 1', 's_waitcnt lgkmcnt(0)', 's_mov_b64 exec, 1')
        A(f'ds_add_rtn_u32 {vr(T0 + 39)}, {vr(T0 + 38)}, {vr(T0 + 39)}', 's_mov_b64 exec, -1')
        D = T0 + 24
        mf = []
        for ks in range(4):
            for tau in range(3):
                c = '0' if ks == 0 else vr(D + 4 * tau, 4)
                mf.append(f'v_mfma_f32_16x16x32_bf16 {vr(D + 4 * tau, 4)}, {vr(a + 4 * ks, 4)}, {ar(128 + 4 * (3 * ks + tau), 4)}, {c}')
        mx, e = m, m + 1
        va = [f'v_max_f32_dpp {vr(mx)}, {vr(st)}, {vr(st)} ' + dpp('quad_perm:[1,0,3,2]'),
              f'v_max_f32_dpp {vr(mx)}, {vr(mx)}, {vr(mx)} ' + dpp('quad_perm:[2,3,0,1]'),
              f'v_max_f32_dpp {vr(mx)}, {vr(mx)}, {vr(mx)} ' + dpp('row_half_mirror'),
              f'v_sub_f32 {vr(e)}, {vr(st)}, {vr(mx)}', f'v_mul_f32 {vr(e)}, {sL2e}, {vr(e)}', f'v_exp_f32 {vr(e)}, {vr(e)}',
              f'v_mul_f32 {vr(e)}, {vr(e)}, {vr(st + 1)}',
              f'v_add_f32_dpp {vr(mx)}, {vr(e)}, {vr(e)} ' + dpp('quad_perm:[1,0,3,2]'),
              f'v_add_f32_dpp {vr(mx)}, {vr(mx)}, {vr(mx)} ' + dpp('quad_perm:[2,3,0,1]'),
              f'v_add_f32_dpp {vr(mx)}, {vr(mx)}, {vr(mx)} ' + dpp('row_half_mirror'),
              f'v_rcp_f32 {vr(mx)}, {vr(mx)}', f'v_mul_f32 {vr(e)}, {vr(e)}, {vr(mx)}']
        for k, (x, y) in enumerate(zip(mf, va)):
            A(x, y)
            if k == 4:
                lf = self.lab('f2')
                A('s_waitcnt lgkmcnt(0)', f'v_readfirstlane_b32 s60, {vr(T0 + 39)}', f'v_mov_b32 {vr(T0 + 38)}, {sTag}', 's_cmp_eq_u32 s60, 3', f's_cbranch_scc0 {lf}')
                A('s_mov_b64 exec, 0xff', f'buffer_store_dword {vr(T0 + 38)}, {vr(RA + 18)}, {WS_SRD}, 0 offen sc1', 's_mov_b64 exec, -1')
                A.label(lf)
        S = T0 + 40
        for r in range(4):
            for tau in range(3):
                op = 'v_mul_f32_dpp' if r == 0 else 'v_fmac_f32_dpp'
                A(f'{op} {vr(S + tau)}, {vr(e)}, {vr(D + 4 * tau + r)} ' + dpp(f'row_newbcast:{r}'))
        A(f'v_mov_b32 {vr(S + 3)}, {vr(S + 2)}', f'v_permlane16_swap_b32 {vr(S)}, {vr(S + 1)}', f'v_permlane16_swap_b32 {vr(S + 2)}, {vr(S + 3)}')
        A(f'v_add_f32 {vr(S)}, {vr(S)}, {vr(S + 1)}', f'v_add_f32 {vr(S + 2)}, {vr(S + 2)}, {vr(S + 3)}')
        A(f'ds_write_b32 {vr(RA + 6)}, {vr(S)}', f'ds_write_b32 {vr(RA + 7)}, {vr(S + 2)}', 's_waitcnt lgkmcnt(0)', 's_barrier')
        l1 = self.lab('ap')
        A(f's_cmp_eq_u32 {sH}, 0', f's_cbranch_scc0 {l1}')
        A(f'ds_read2_b32 {vr(S, 2)}, {vr(RA + 8)} offset0:0 offset1:96', f'ds_read_b32 {vr(S + 2)}, {vr(RA + 8)} offset:768', f'ds_read_b32 {vr(S + 3)}, {vr(RA + 8)} offset:1152')
        A('s_mov_b32 exec_hi, 0xffff', 's_waitcnt lgkmcnt(0)')
        A(f'v_add_f32 {vr(S)}, {vr(S)}, {vr(S + 1)}', f'v_add_f32 {vr(S + 2)}, {vr(S + 2)}, {vr(S + 3)}', f'v_add_f32 {vr(S)}, {vr(S)}, {vr(S + 2)}')
        A(f'buffer_store_dword {vr(S)}, {vr(RA + 9)}, {WS_SRD}, 0 offen sc1')
        A('s_mov_b64 exec, -1')
        A.label(l1)
        self.stamp(7)
        A(f's_cmp_lt_u32 {sN}, 9', 's_cbranch_scc0 L_fin')
        lw, lj = self.lab('fw'), self.lab('fj')
        q = T0 + 64
        for k in range(4):
            A(f'v_mov_b32 {vr(q + 8 + k)}, 0')
        A(f's_cmp_eq_u32 {sW}, 3', f's_cbranch_scc0 {lw}')
        chk, ok = self.lab('f3c'), self.lab('f3ok')
        fl = T0 + 44
        A(f's_lshl_b32 s60, {sS}, 15', f's_add_u32 s60, s60, {FLAG3}')
        A(f'v_lshl_add_u32 {vr(fl + 3)}, {vLane}, 7, s60', f'v_mov_b32 {vr(fl + 2)}, {sTag}')
        A(f's_mov_b32 {sSpin}, {self.spin}', 's_mov_b32 s60, 8192', 's_mov_b32 s61, 16384')
        A.label(chk)
        A(f'buffer_load_dword {vr(fl)}, {vr(fl + 3)}, {WS_SRD}, 0 offen sc1', f'buffer_load_dword {vr(fl + 1)}, {vr(fl + 3)}, {WS_SRD}, s60 offen sc1')
        A('s_mov_b64 exec, 0xffff', f'buffer_load_dword {vr(fl + 2)}, {vr(fl + 3)}, {WS_SRD}, s61 offen sc1', 's_mov_b64 exec, -1', 's_waitcnt vmcnt(0)')
        A(f'v_xor_b32 {vr(fl)}, {sTag}, {vr(fl)}', f'v_xor_b32 {vr(fl + 1)}, {sTag}, {vr(fl + 1)}', f'v_xor_b32 {vr(fl + 4)}, {sTag}, {vr(fl + 2)}')
        A(f'v_or3_b32 {vr(fl)}, {vr(fl)}, {vr(fl + 1)}, {vr(fl + 4)}', f'v_cmp_ne_u32 vcc, 0, {vr(fl)}')
        self.spin_end(chk, ok)
        A.label(ok)
        A(f's_branch {lj}')
        A.label(lw)
        A(f's_cmp_eq_u32 {sW}, 0', f's_cbranch_scc0 {lj}')
        p, hh = T0 + 44, T0 + 52
        chk, ok = self.lab('f2c'), self.lab('f2ok')
        A(f's_mov_b32 {sSpin}, {self.spin}')
        A.label(chk)
        A(f'buffer_load_dword {vr(p)}, {vr(RA + 13)}, {WS_SRD}, 0 offen sc1', 's_waitcnt vmcnt(0)', f'v_cmp_ne_u32 vcc, {sTag}, {vr(p)}')
        self.spin_end(chk, ok)
        A.label(ok)
        chk, ok = self.lab('e2'), self.lab('e2ok')
        A(f's_mov_b32 {sSpin}, {self.spin}')
        A.label(chk)
        A(f'buffer_load_dwordx4 {vr(p, 4)}, {vr(RA + 10)}, {WS_SRD}, 0 offen sc1', 's_waitcnt vmcnt(0)')
        for c in ('quad_perm:[1,0,3,2]', 'quad_perm:[2,3,0,1]', 'row_half_mirror'):
            for k in range(4):
                A(f'v_add_f32_dpp {vr(p + k)}, {vr(p + k)}, {vr(p + k)} ' + dpp(c))
        A(f'v_add_f32 {vr(p + 4)}, {vr(p)}, {vr(p + 1)}', f'v_add_f32 {vr(p + 5)}, {vr(p + 2)}, {vr(p + 3)}', f'v_cmp_u_f32 vcc, {vr(p + 4)}, {vr(p + 5)}')
        self.spin_end(chk, ok)
        A.label(ok)
        A(f'v_cvt_pk_bf16_f32 {vr(p)}, {vr(p)}, {vr(p + 1)}', f'v_cvt_pk_bf16_f32 {vr(p + 2)}, {vr(p + 2)}, {vr(p + 3)}')
        for k in range(2):
            A(f'v_lshlrev_b32 {vr(hh + 2 * k)}, 16, {vr(p + 2 * k)}', f'v_and_b32 {vr(hh + 2 * k + 1)}, 0xffff0000, {vr(p + 2 * k)}')
            A(f'v_lshlrev_b32 {vr(p + 4)}, 16, {vr(xr + k)}', f'v_and_b32 {vr(p + 5)}, 0xffff0000, {vr(xr + k)}')
            A(f'v_add_f32 {vr(hh + 2 * k)}, {vr(hh + 2 * k)}, {vr(p + 4)}', f'v_add_f32 {vr(hh + 2 * k + 1)}, {vr(hh + 2 * k + 1)}, {vr(p + 5)}')
            A(f'v_cvt_pk_bf16_f32 {vr(p + 4)}, {vr(hh + 2 * k)}, {vr(hh + 2 * k + 1)}')
            A(f'v_lshlrev_b32 {vr(hh + 2 * k)}, 16, {vr(p + 4)}', f'v_and_b32 {vr(hh + 2 * k + 1)}, 0xffff0000, {vr(p + 4)}')
        A(f'ds_write_b128 {vr(RA + 14)}, {vr(hh, 4)}', f'v_lshlrev_b32 {vr(p)}, 2, {vr(self.fields[3])}', f'v_add_u32 {vr(p)}, {HRES}, {vr(p)}')
        A('s_waitcnt lgkmcnt(0)', f'ds_read_b32 {vr(hh)}, {vr(p)}', 's_waitcnt lgkmcnt(0)')
        A.label(lj)
        A('s_mov_b32 s60, 2048', 's_mov_b32 s61, 4096', f's_mov_b32 {sSpin}, {self.spin}', 's_barrier')
        self.stamp(8)
        chk, ok = self.lab('e3'), self.lab('e3ok')
        A.label(chk)
        A(f'buffer_load_dwordx4 {vr(q, 4)}, {vr(RA + 11)}, {WS_SRD}, 0 offen sc1')
        A(f'buffer_load_dwordx4 {vr(q + 4, 4)}, {vr(RA + 11)}, {WS_SRD}, s60 offen sc1')
        A('s_mov_b64 exec, 0xffff')
        A(f'buffer_load_dwordx4 {vr(q + 8, 4)}, {vr(RA + 11)}, {WS_SRD}, s61 offen sc1')
        A('s_mov_b64 exec, -1', 's_waitcnt vmcnt(1)')
        A(f'v_pk_add_f32 {vr(q, 2)}, {vr(q, 2)}, {vr(q + 4, 2)}', f'v_pk_add_f32 {vr(q + 2, 2)}, {vr(q + 2, 2)}, {vr(q + 6, 2)}')
        A('s_waitcnt vmcnt(0)')
        A(f'v_pk_add_f32 {vr(q, 2)}, {vr(q, 2)}, {vr(q + 8, 2)}', f'v_pk_add_f32 {vr(q + 2, 2)}, {vr(q + 2, 2)}, {vr(q + 10, 2)}')
        A(f'v_pk_add_f32 {vr(q + 4, 2)}, {vr(q, 2)}, {vr(q + 2, 2)}', f'v_cmp_u_f32 vcc, {vr(q + 4)}, {vr(q + 5)}')
        self.spin_end(chk, ok)
        A.label(ok)
        self.stamp(9)
        for c in ('row_ror:4', 'row_ror:8'):
            for k in range(4):
                A(f'v_add_f32_dpp {vr(q + k)}, {vr(q + k)}, {vr(q + k)} ' + dpp(c))
        A('s_mov_b32 exec_lo, 0xf000f', 's_mov_b32 exec_hi, 0xf000f', f'ds_write_b128 {vr(RA + 15)}, {vr(q, 4)}', 's_mov_b64 exec, -1', 's_waitcnt lgkmcnt(0)', 's_barrier')
        A(f's_cmp_eq_u32 {sW}, 0', 's_cbranch_scc0 L_fin')
        A(f'ds_read2_b32 {vr(q, 2)}, {vr(RA + 16)} offset0:0 offset1:16', f'ds_read2_b32 {vr(q + 2, 2)}, {vr(RA + 16)} offset0:32 offset1:48', 's_waitcnt lgkmcnt(0)')
        A(f'v_pk_add_f32 {vr(q, 2)}, {vr(q, 2)}, {vr(q + 2, 2)}', f'v_add_f32 {vr(q)}, {vr(q)}, {vr(q + 1)}')
        A(f'v_mov_b32 {vr(q + 1)}, {vr(q)}', f'v_permlane16_swap_b32 {vr(q)}, {vr(q + 1)}', f'v_add_f32 {vr(q)}, {vr(q)}, {vr(q + 1)}')
        A(f'v_mov_b32 {vr(q + 1)}, {vr(q)}', f'v_permlane32_swap_b32 {vr(q)}, {vr(q + 1)}', f'v_add_f32 {vr(q)}, {vr(q)}, {vr(q + 1)}')
        A(f'v_cvt_pk_bf16_f32 {vr(q)}, {vr(q)}, {vr(q)}', f'v_lshlrev_b32 {vr(q)}, 16, {vr(q)}', f'v_add_f32 {vr(q)}, {vr(q)}, {vr(hh)}')
        A(f'v_mov_b32_dpp {vr(q + 1)}, {vr(q)} ' + dpp('quad_perm:[1,1,3,3]'), f'v_cvt_pk_bf16_f32 {vr(q)}, {vr(q)}, {vr(q + 1)}')
        A('s_mov_b64 exec, 0x5555', f'buffer_store_dword {vr(q)}, {vr(RA + 17)}, {OUT_SRD}, 0 offen', 's_mov_b64 exec, 1')
        A(f's_or_b32 s60, {sGF}, {sN}', f's_or_b32 s60, s60, {sW}', 's_cmp_eq_u32 s60, 0', 's_cbranch_scc0 L_fin')
        A(f'v_mov_b32 {vr(q + 2)}, {sTag}', f'v_mov_b32 {vr(q + 3)}, 0')
        A(f'buffer_store_dword {vr(q + 2)}, {vr(q + 3)}, {WS_SRD}, 0 offen sc1')
        A('s_branch L_fin')

    def flag3(self, when):
        A = self.A
        if self.f3 == when:
            l = self.lab('fl')
            A(f's_cmp_eq_u32 {sW}, 3', f's_cbranch_scc0 {l}', f's_lshl_b32 s60, {sGF}, 7', f's_add_u32 s60, s60, {FLAG3}')
            A(f'v_mov_b32 {vr(T0 + 90)}, {sTag}', f'v_lshlrev_b32 {vr(T0 + 91)}, 15, {vLane}', f's_mov_b64 exec, {(1 << self.rep3) - 1}')
            A(f'buffer_store_dword {vr(T0 + 90)}, {vr(T0 + 91)}, {WS_SRD}, s60 offen sc1', 's_mov_b64 exec, -1')
            A.label(l)
            if when == 2:
                A('s_nop 4')

    def role_ffn(self):
        A = self.A
        for G in range(1, 8):
            A(f's_mov_b32 s{55 + G}, {4608 * G}')
        p, e = T0, T0 + 32

        def gload(G):
            so = '0' if G == 0 else f's{55 + G}'
            A(f'buffer_load_dwordx4 {vr(p + 4 * G, 4)}, {vr(RA + 16)}, {WS_SRD}, {so} offen sc1', f'buffer_load_dword {vr(e + G)}, {vr(RA + 17)}, {WS_SRD}, {so} offen sc1')
        fl = T0 + 46
        A(f'buffer_load_dword {vr(fl)}, {vr(RA + 21)}, {WS_SRD}, 0 offen sc1')
        x = T0 + 80
        A(f'v_lshlrev_b32 {vr(x)}, 16, {vr(vXo)}', f'v_and_b32 {vr(x + 1)}, 0xffff0000, {vr(vXo)}')
        A(f'v_lshlrev_b32 {vr(x + 2)}, 16, {vr(vXo + 1)}', f'v_and_b32 {vr(x + 3)}, 0xffff0000, {vr(vXo + 1)}')
        A(f'v_lshlrev_b32 {vr(x + 4)}, 16, {vr(vXo + 2)}')
        A('s_waitcnt vmcnt(1)', 's_barrier')
        self.stamp(6)
        for ks in range(18):
            for u in range(2):
                base = RA + 10 + (ks >= 9)
                A(f'ds_read_b64_tr_b16 {ar(128 + 4 * ks + 2 * u, 2)}, {vr(base)} offset:{(ks % 9) * 4096 + u * 256}')
        poll, again, allg = self.lab('f2p'), self.lab('f2a'), self.lab('f2all')
        A(f's_mov_b32 {sSpin}, {self.spin}', 's_mov_b32 s69, 0', 's_mov_b64 s[70:71], 0', 's_waitcnt vmcnt(0)')
        A.label(poll)
        A(f'v_cmp_eq_u32 vcc, {sTag}, {vr(fl)}', 's_cmp_eq_u64 vcc, s[70:71]', f's_cbranch_scc1 {again}', 's_mov_b64 s[70:71], vcc')
        for G in range(8):
            sk = self.lab('g')
            A(f's_bitcmp1_b32 s69, {G}', f's_cbranch_scc1 {sk}', f's_bfe_u32 s63, s{70 + G // 4}, {(8 << 16) | (8 * (G & 3)):#x}', 's_cmp_eq_u32 s63, 0xff', f's_cbranch_scc0 {sk}')
            A(f's_bitset1_b32 s69, {G}')
            gload(G)
            A.label(sk)
        A('s_cmp_eq_u32 s69, 0xff', f's_cbranch_scc1 {allg}')
        A.label(again)
        sweep = self.lab('sweep')
        A(f's_sub_u32 {sSpin}, {sSpin}, 1', f's_cbranch_scc1 {sweep}')
        A(f'buffer_load_dword {vr(fl)}, {vr(RA + 21)}, {WS_SRD}, 0 offen sc1', 's_waitcnt vmcnt(0)', f's_branch {poll}')
        A.label(allg)
        chk, ok = self.lab('e2'), self.lab('e2ok')
        A(f's_mov_b32 {sSpin}, {self.spin}')
        A.label(chk)
        h = T0 + 48
        A('s_waitcnt vmcnt(0)')
        for G in range(1, 8):
            src = p if G == 1 else h
            A(f'v_pk_add_f32 {vr(h, 2)}, {vr(src, 2)}, {vr(p + 4 * G, 2)}', f'v_pk_add_f32 {vr(h + 2, 2)}, {vr(src + 2, 2)}, {vr(p + 4 * G + 2, 2)}')
            if G % 2:
                A(f'v_pk_add_f32 {vr(e + 8, 2)}, {vr(e + G - 1, 2)}, ' + ('0' if G == 1 else vr(e + 8, 2)) if G == 1 else f'v_pk_add_f32 {vr(e + 8, 2)}, {vr(e + G - 1, 2)}, {vr(e + 8, 2)}')
        A(f'v_pk_add_f32 {vr(e + 10, 2)}, {vr(h, 2)}, {vr(h + 2, 2)}', f'v_add_f32 {vr(h + 4)}, {vr(e + 8)}, {vr(e + 9)}', f'v_add_f32 {vr(e + 10)}, {vr(e + 10)}, {vr(e + 11)}')
        A(f'v_cmp_u_f32 vcc, {vr(h + 4)}, {vr(e + 10)}')
        A(f's_cbranch_vccz {ok}', f's_sub_u32 {sSpin}, {sSpin}, 1', f's_cbranch_scc1 {ok}')
        A.label(sweep)
        A(f's_and_b32 {sSpin}, {sSpin}, 0xffff')
        for G in range(8):
            gload(G)
        A(f's_branch {chk}')
        A.label(ok)
        self.stamp(7)
        A(f'v_cvt_pk_bf16_f32 {vr(h + 1)}, {vr(h)}, {vr(h + 1)}', f'v_cvt_pk_bf16_f32 {vr(h + 3)}, {vr(h + 2)}, {vr(h + 3)}')
        A(f'v_lshlrev_b32 {vr(h)}, 16, {vr(h + 1)}', f'v_and_b32 {vr(h + 1)}, 0xffff0000, {vr(h + 1)}', f'v_cvt_pk_bf16_f32 {vr(h + 4)}, {vr(h + 4)}, {vr(h + 4)}')
        A(f'v_lshlrev_b32 {vr(h + 2)}, 16, {vr(h + 3)}', f'v_and_b32 {vr(h + 3)}, 0xffff0000, {vr(h + 3)}', f'v_lshlrev_b32 {vr(h + 4)}, 16, {vr(h + 4)}')
        A(f'v_pk_add_f32 {vr(h, 2)}, {vr(h, 2)}, {vr(x, 2)}', f'v_pk_add_f32 {vr(h + 2, 2)}, {vr(h + 2, 2)}, {vr(x + 2, 2)}', f'v_add_f32 {vr(h + 4)}, {vr(h + 4)}, {vr(x + 4)}')
        A(f'v_cvt_pk_bf16_f32 {vr(h + 1)}, {vr(h)}, {vr(h + 1)}', f'v_cvt_pk_bf16_f32 {vr(h + 3)}, {vr(h + 2)}, {vr(h + 3)}', f'v_cvt_pk_bf16_f32 {vr(h + 4)}, {vr(h + 4)}, {vr(h + 4)}')
        A(f'v_lshlrev_b32 {vr(h)}, 16, {vr(h + 1)}', f'v_and_b32 {vr(h + 1)}, 0xffff0000, {vr(h + 1)}')
        A(f'v_lshlrev_b32 {vr(h + 2)}, 16, {vr(h + 3)}', f'v_and_b32 {vr(h + 3)}, 0xffff0000, {vr(h + 3)}', f'v_lshlrev_b32 {vr(h + 4)}, 16, {vr(h + 4)}')
        self.layernorm(h, T0 + 56)
        self.flag3(1)
        D = T0
        reads = [f'ds_read_b128 {ar(4 * ks, 4)}, {vHNa} offset:{64 * ks}' for ks in range(18)]
        for tau in range(9):
            for u in range(2):
                reads.append(f'ds_read_b64_tr_b16 {ar(200 + 4 * tau + 2 * u, 2)}, {vr(RA + 12 + tau % 4)} offset:{(tau // 4) * 128 + u * 4608}')
        issued = 0
        for _ in range(15):
            A(reads[issued]); issued += 1
        for ks in range(18):
            A(f's_waitcnt lgkmcnt({issued - ks - 1})')
            A(f'v_mfma_f32_16x16x32_bf16 {vr(D, 4)}, {ar(4 * ks, 4)}, {ar(128 + 4 * ks, 4)}, ' + ('0' if ks == 0 else vr(D, 4)))
            while issued < len(reads) and issued - (ks + 1) < 15:
                A(reads[issued]); issued += 1
        while issued < len(reads):
            A(reads[issued]); issued += 1
        self.flag3(2)
        gt, up = T0 + 4, T0 + 5
        A(f'v_mov_b32 {vr(gt)}, {vr(D)}', f'v_mov_b32 {vr(up)}, {vr(D + 1)}')
        A(f'v_mov_b32_dpp {vr(gt)}, {vr(D + 1)} ' + dpp('row_shr:8', bank=0xc), f'v_mov_b32_dpp {vr(up)}, {vr(D)} ' + dpp('row_shl:8', bank=0x3))
        A(f'v_cvt_pk_bf16_f32 {vr(up)}, {vr(gt)}, {vr(up)}', f'v_lshlrev_b32 {vr(gt)}, 16, {vr(up)}', f'v_and_b32 {vr(up)}, 0xffff0000, {vr(up)}')
        e = T0 + 6
        A(f'v_mul_f32 {vr(e)}, {sL2e}, {vr(gt)}', f'v_exp_f32 {vr(e)}, -{vr(e)}', f'v_add_f32 {vr(e)}, 1.0, {vr(e)}', f'v_rcp_f32 {vr(e)}, {vr(e)}')
        A(f'v_mul_f32 {vr(e)}, {vr(gt)}, {vr(e)}', f'v_cvt_pk_bf16_f32 {vr(e)}, {vr(e)}, {vr(e)}', f'v_lshlrev_b32 {vr(e)}, 16, {vr(e)}')
        A(f'v_mul_f32 {vr(e)}, {vr(e)}, {vr(up)}', f'v_cvt_pk_bf16_f32 {vr(e)}, {vr(e)}, {vr(e)}')
        A('s_mov_b64 exec, 0xffff', f'ds_write_b16 {vr(RA + 18)}, {vr(e)}', 's_mov_b64 exec, -1', 's_waitcnt lgkmcnt(0)', 's_barrier')
        self.stamp(8)
        self.flag3(3)
        B = T0 + 8
        A(f'ds_read_b128 {vr(B, 4)}, {vr(RA + 19)}', 's_waitcnt lgkmcnt(0)')
        D2 = T0 + 12
        for tau in range(9):
            A(f'v_mfma_f32_16x16x32_bf16 {vr(D2 + 4 * tau, 4)}, {ar(200 + 4 * tau, 4)}, {vr(B, 4)}, 0')
        A('s_mov_b32 exec_lo, 0x30003', 's_mov_b32 exec_hi, 0x30003')
        for tau in range(9):
            A(f's_mov_b32 s60, {18432 * tau}', f'buffer_store_dwordx4 {vr(D2 + 4 * tau, 4)}, {vr(RA + 20)}, {WS_SRD}, s60 offen sc1')
        self.stamp(9)

    def fin(self):
        A = self.A
        A.label('L_fin')
        if self.diag:
            A('s_mov_b64 exec, 1', 's_getreg_b32 s60, hwreg(HW_REG_XCC_ID)', 's_and_b32 s60, s60, 15', f's_lshl_b32 s61, {sRole}, 4', 's_or_b32 s60, s60, s61')
            A('s_lshl_b32 s61, s2, 2', f's_add_u32 s61, s61, {sW}', 's_lshl_b32 s61, s61, 6', f's_add_u32 s61, s61, {STAMPS}', 'v_mov_b32 v1, s61')
            A('s_waitcnt vmcnt(0)', 's_memrealtime s[100:101]', 's_waitcnt lgkmcnt(0)', 's_mov_b32 s90, s100')
            for k in range(11):
                A(f'v_mov_b32 v2, s{80 + k}', f'global_store_dword v1, v2, s[12:13] offset:{4 * k}')
            A('v_mov_b32 v2, s60', 'global_store_dword v1, v2, s[12:13] offset:60')
            if self.diag > 1:
                A(f's_or_b32 s61, s2, {sW}', 's_cmp_eq_u32 s61, 0', 's_cbranch_scc0 L_end')
                if self.pad:
                    A.label('L_pad')
                    A('s_memrealtime s[62:63]', 's_waitcnt lgkmcnt(0)', 's_sub_u32 s62, s62, s80', f's_cmp_lt_u32 s62, {self.pad * 100}', 's_cbranch_scc1 L_pad')
                A('s_load_dwordx2 s[62:63], s[0:1], 80', 'v_mov_b32 v1, 0', 's_waitcnt lgkmcnt(0)')
                for k in range(11):
                    A(f's_sub_u32 s61, s{80 + k}, s80', 'v_mov_b32 v2, s61', f'global_store_dword v1, v2, s[62:63] offset:{4 * k}')
        A.label('L_end')
        A('s_endpgm')

    def build(self):
        A = self.A
        if self.diag:
            for k in range(80, 91):
                A(f's_mov_b32 s{k}, 0')
        self.head()
        self.stream()
        A.label('L_tail')
        self.stamp(5)
        A(f's_cmp_eq_u32 {sRole}, 1', 's_cbranch_scc1 L_ffn', f's_cmp_eq_u32 {sRole}, 0', 's_cbranch_scc0 L_fin')
        self.role_t2()
        A.label('L_ffn')
        self.role_ffn()
        self.fin()
        self.helper()
        self.slow_paths()
        A.label('L_codeend')
        return A.finish()


HEADER = open(os.path.join(os.path.dirname(os.path.abspath(__file__)), 'header.txt')).read()


def make(**kw):
    g = Gen(**kw)
    body = g.build()
    return f"""{HEADER}; @launch grid=(256,1,1) block=(256,1,1) lds={LDS_BYTES}
.amdgcn_target "amdgcn-amd-amdhsa--gfx950"
.text
.globl {KNAME}
.p2align 8
.type {KNAME},@function
{KNAME}:
{body}
.section .rodata,"a"
.p2align 6
.amdhsa_kernel {KNAME}
  .amdhsa_next_free_vgpr 512
  .amdhsa_next_free_sgpr 102
  .amdhsa_accum_offset 256
  .amdhsa_group_segment_fixed_size 0
  .amdhsa_kernarg_size 96
  .amdhsa_user_sgpr_count 2
  .amdhsa_user_sgpr_kernarg_segment_ptr 1
  .amdhsa_system_sgpr_workgroup_id_x 1
  .amdhsa_float_denorm_mode_32 3
.end_amdhsa_kernel
"""


if __name__ == '__main__':
    out = sys.argv[1]
    kw = {}
    for a in sys.argv[2:]:
        k, v = a.split('=')
        kw[k] = int(v) if v.lstrip('-').isdigit() else v.replace('+', ' ')
    text = make(**kw)
    open(out, 'w').write(text)
```

```python
import sys, os, struct
sys.path.insert(0, os.path.dirname(os.path.abspath(__file__)))
from emit import Asm

KNAME = "sequential_preLN__gqa_block_cached__glu_gated_swiglu__decode_kernel"

FLAG1, FLAG2, FLAG3 = 16384, 1536 << 10, 1792 << 10
EPOCH, CNT, OBUF, SBUF, ABUF, FBUF, QBUF = 0, 4096, 65536, 1408 << 10, 204800, 262144, 1 << 20
WS_BYTES = 2 << 20
STAMPS = 16 << 20
LW = 0
LW2 = 73728
SCR = 110592
CTR, HRES, FIN, ONES = SCR + 8704, SCR + 8768, SCR + 8832, SCR + 10048
HN, STAT, QL, MST, HH, RED, CMB = SCR, SCR + 2304, SCR + 2368, SCR + 2880, SCR + 2944, SCR + 3072, SCR + 4608
ZERO = SCR + 11264
LDS_BYTES = SCR + 11264 + 64

def f2u(x):
    return struct.unpack('<I', struct.pack('<f', x))[0]

sW = 's3'
K_SRD, V_SRD, WS_SRD, X_SRD, WA_SRD, W2_SRD, OUT_SRD = 's[4:7]', 's[8:11]', 's[12:15]', 's[16:19]', 's[20:23]', 's[24:27]', 's[28:31]'
sT, sIt, sTag, sRole, sGF, sN, sScale, sL2e = 's32', 's33', 's34', 's35', 's36', 's37', 's38', 's39'
mQ1, mQ2, mQ3 = 's[40:41]', 's[42:43]', 's[44:45]'
sPC = 's[46:47]'
mHi, mPar = 's[72:73]', 's[74:75]'
sSpin = 's50'
sPool, sB, sG, sS = 's51', 's52', 's53', 's54'
W3_SRD = 's[64:67]'
sH = 's68'
vLane = 'v1'
vK0, vK1, vV0, vV1 = 'v2', 'v3', 'v4', 'v5'
SEL = 6
BQ = 10
vM, vL = 'v18', 'v19'
ACC = 20
DQ = 24
SS = 40
PA = 48
vXo = 80
vEv = 'v84'
vOad, vSad = 'v85', 'v86'
vHNo, vHNe, vStW, vStR, vHNa = 'v87', 'v88', 'v89', 'v90', 'v91'
vCmbW, vCmbR, vMstW, vMstR, vMstO = 'v92', 'v93', 'v94', 'v95', 'v96'
vPf = 'v97'
vC, vCa = 'v98', 'v99'
vQw, vQg, vQr = 'v83', 'v47', 'v46'
HA = 200
RA = 100
T0 = 128


def vr(a, n=1):
    return f'v{a}' if n == 1 else f'v[{a}:{a + n - 1}]'


def ar(a, n=1):
    return f'a{a}' if n == 1 else f'a[{a}:{a + n - 1}]'


def dpp(ctrl, row=0xf, bank=0xf, bc=False):
    return f'{ctrl} row_mask:{row:#x} bank_mask:{bank:#x}' + (' bound_ctrl:0' if bc else '')


class VM:
    def __init__(self, A):
        self.A, self.q = A, []

    def op(self, text, tag=None):
        self.A(text)
        self.q.append(tag)

    def wait(self, tag):
        last = max(i for i, t in enumerate(self.q) if t == tag)
        n = len(self.q) - 1 - last
        assert n <= 63
        self.A(f's_waitcnt vmcnt({n})')
        self.q = self.q[last + 1:]


class Gen:
    def __init__(self, W=3, L=7, diag=0, spin=8192, pol='nt', wpol='nt', pad=0, NS=58, npre=3, e13=18, e2=0, eo=8, late_pf=48, pace=2, smask=0x7ff, a13=2, b13=4, ao=2, bo=4, sleep=0, sl3=0, sl2=0, sl1=0, repf=0, f3=1, f2=1, e1s=1, rep3=8, sstr=128, cnt=None, skip='', lnf=1, e1d=0, cntdbg=0, fst=0, pd=1, pst=2, pk=1, ps1=0, ps2=0, ps3=0, f2e=0, f1d=0, f2d=0, dir2=0, osc='', dsl=0, mrt=1, kfirst=0):
        self.mrt, self.kfirst = mrt, kfirst
        self.dir2, self.osc, self.dsl = dir2, osc, dsl
        self.f2d = f2d
        self.f2e, self.f1d = f2e, f1d
        self.ps = (ps1, ps2, ps3)
        self.pd, self.pst, self.pk = pd, pst, pk
        self.fst = fst
        self.lnf, self.e1d, self.cntdbg = lnf, e1d, cntdbg
        self.cnt = 4 * (W - 1) if cnt is None else cnt
        W = (self.cnt + 3) // 4 + 1
        self.skip = skip
        self.rep3, self.sstr = rep3, sstr
        self.f3, self.f2, self.e1s = f3, f2, e1s
        self.repf = repf
        self.sl3, self.sl2, self.sl1 = sl3, sl2, sl1
        self.smask, self.a13, self.b13, self.ao, self.bo, self.sleep = smask, a13, b13, ao, bo, sleep
        self.pace = pace
        assert W <= 4 and late_pf % 2 == 0 and a13 <= b13 <= e13 and ao <= bo <= eo
        self.pad, self.NS, self.npre, self.e13, self.e2, self.eo = pad, NS, npre, e13, e2, eo
        self.W, self.L, self.diag, self.spin, self.pol, self.wpol = W, L, diag, spin, pol, wpol
        self.late_pf = late_pf
        self.A = Asm()
        self.vm = VM(self.A)
        self.slow = []
        self.nlab = 0

    def lab(self, base):
        self.nlab += 1
        return f'L_{base}{self.nlab}'

    def stamp(self, k):
        if self.diag and (self.smask >> k) & 1:
            self.A('s_memrealtime s[100:101]', 's_waitcnt lgkmcnt(0)', f's_mov_b32 s{80 + k}, s100')

    def piece(self, n, track=True):
        kind, slot = n & 3, n & 7
        srd = K_SRD if kind < 2 else V_SRD
        va = (vK0, vK1, vV0, vV1)[kind]
        for t in range(4):
            txt = f'buffer_load_dwordx4 {ar(slot * 16 + 4 * t, 4)}, {va}, {srd}, {sT} offen offset:{t * 1024} {self.pol}'
            if track:
                self.vm.op(txt, ('P', n))
            else:
                self.A(txt)

    def consume(self, n):
        A = self.A
        kind, slot = n & 3, n & 7
        if kind < 2:
            for t in range(4):
                d = DQ + 4 * (2 * kind + t // 2)
                c = '0' if t % 2 == 0 else vr(d, 4)
                A(f'v_mfma_f32_16x16x32_bf16 {vr(d, 4)}, {ar(slot * 16 + 4 * t, 4)}, {vr(BQ + 4 * (t & 1), 4)}, {c}')
            if kind == 1:
                self.softmax()
        else:
            for t in range(4):
                tt = 4 * (kind - 2) + t
                A(f'v_mfma_f32_16x16x32_bf16 {vr(ACC, 4)}, {vr(PA + 4 * tt, 4)}, {ar(slot * 16 + 4 * t, 4)}, {vr(ACC, 4)}')

    def softmax(self):
        A = self.A
        for m in range(4):
            A(f'v_mov_b32_dpp {vr(SS + m)}, {vr(DQ + 4 * m)} ' + dpp('quad_perm:[0,0,0,0]'))
            for b in range(1, 4):
                A(f'v_add_f32_dpp {vr(SS + m)}, {vr(DQ + 4 * m + b)}, {vr(SS + m)} ' + dpp(f'quad_perm:[{b},{b},{b},{b}]'))
        R, P, Tm = 'v44', 'v45', 'v46'
        A(f'v_cndmask_b32 {R}, {vr(SS)}, {vr(SS + 1)}, {mQ1}')
        A(f'v_cndmask_b32 {R}, {R}, {vr(SS + 2)}, {mQ2}')
        A(f'v_cndmask_b32 {R}, {R}, {vr(SS + 3)}, {mQ3}')
        A(f'v_cvt_pk_bf16_f32 {R}, {R}, {R}')
        A(f'v_lshlrev_b32 {R}, 16, {R}')
        A(f'v_mul_f32 {R}, {sScale}, {R}')
        A(f'v_cvt_pk_bf16_f32 {R}, {R}, {R}')
        A(f'v_lshlrev_b32 {R}, 16, {R}')
        slow, back = self.lab('slow'), self.lab('back')
        A(f'v_cmp_gt_f32 vcc, {R}, {vM}')
        A(f's_cbranch_vccnz {slow}')
        A.label(back)
        self.slow.append((slow, back))
        A(f'v_sub_f32 {P}, {R}, {vM}')
        A(f'v_mul_f32 {P}, {sL2e}, {P}')
        A(f'v_exp_f32 {P}, {P}')
        A(f'v_add_f32 {vL}, {vL}, {P}')
        A(f'v_mov_b32_dpp {Tm}, {P} ' + dpp('row_shl:4', bc=True))
        A(f'v_cvt_pk_bf16_f32 {P}, {P}, {Tm}')
        for t in range(8):
            A(f'v_mov_b32_dpp {vr(SS + (t & 3))}, {P} ' + dpp(f'row_newbcast:{8 * (t & 1) + (t >> 1)}'))
            if t % 4 == 3:
                for tt in range(t - 3, t + 1):
                    for d in range(4):
                        b = vr(SS + (tt & 3))
                        A(f'v_perm_b32 {vr(PA + 4 * tt + d)}, {b}, {b}, {vr(SEL + d)}')

    def slow_paths(self):
        A = self.A
        R, t, t2, f = 'v44', 'v45', 'v46', 'v47'
        for slow, back in self.slow:
            A.label(slow)
            A(f'v_max_f32_dpp {t}, {R}, {R} ' + dpp('quad_perm:[1,0,3,2]'))
            A(f'v_max_f32_dpp {t}, {t}, {t} ' + dpp('quad_perm:[2,3,0,1]'))
            A(f'v_max_f32_dpp {t}, {t}, {t} ' + dpp('row_ror:8'))
            A(f'v_mov_b32 {t2}, {t}', f'v_permlane16_swap_b32 {t}, {t2}', f'v_max_f32 {t}, {t}, {t2}')
            A(f'v_mov_b32 {t2}, {t}', f'v_permlane32_swap_b32 {t}, {t2}', f'v_max3_f32 {t}, {t}, {t2}, {vM}')
            A(f'v_sub_f32 {f}, {vM}, {t}', f'v_mul_f32 {f}, {sL2e}, {f}', f'v_exp_f32 {f}, {f}')
            A(f'v_mov_b32 {vM}, {t}', f'v_mul_f32 {vL}, {vL}, {f}')
            A(f'v_readlane_b32 s48, {f}, 0', f'v_readlane_b32 s49, {f}, 4')
            A(f'v_mov_b32 {t}, s48', f'v_mov_b32 {t2}, s49', f'v_cndmask_b32 {t}, {t}, {t2}, {mHi}')
            for r in range(4):
                A(f'v_mul_f32 {vr(ACC + r)}, {vr(ACC + r)}, {t}')
            A('s_nop 1', f's_branch {back}')

    def ln_stage1(self, h, tmp):
        A = self.A
        d, s1, s2, hx = tmp, tmp + 6, tmp + 7, tmp + 5
        A(f'v_readfirstlane_b32 s48, {vr(h)}')
        for k in range(5):
            A(f'v_subrev_f32 {vr(d + k)}, s48, {vr(h + k)}')
        A(f'v_mul_f32 {vr(hx)}, 0.5, {vr(d + 4)}')
        A(f'v_add_f32 {vr(s1)}, {vr(d)}, {vr(d + 1)}', f'v_mul_f32 {vr(s2)}, {vr(d)}, {vr(d)}')
        A(f'v_add_f32 {vr(s1)}, {vr(s1)}, {vr(d + 2)}', f'v_fmac_f32 {vr(s2)}, {vr(d + 1)}, {vr(d + 1)}')
        A(f'v_add_f32 {vr(s1)}, {vr(s1)}, {vr(d + 3)}', f'v_fmac_f32 {vr(s2)}, {vr(d + 2)}, {vr(d + 2)}')
        A(f'v_add_f32 {vr(s1)}, {vr(s1)}, {vr(hx)}', f'v_fmac_f32 {vr(s2)}, {vr(d + 3)}, {vr(d + 3)}')
        A(f'v_mov_b32 {vr(tmp + 8)}, s48', f'v_fmac_f32 {vr(s2)}, {vr(hx)}, {vr(d + 4)}')
        for c, row in (('quad_perm:[1,0,3,2]', 0xf), ('quad_perm:[2,3,0,1]', 0xf), ('row_half_mirror', 0xf), ('row_mirror', 0xf),
                       ('row_bcast:15', 0xa), ('row_bcast:31', 0xc)):
            for s in (s1, s2):
                A(f'v_add_f32_dpp {vr(s)}, {vr(s)}, {vr(s)} ' + dpp(c, row=row))
        A('s_mov_b32 exec_lo, 0', 's_mov_b32 exec_hi, 0x80000000')
        A(f'ds_write_b96 {vStW}, {vr(s1, 3)}')
        A('s_mov_b64 exec, -1')

    def ln_stage2(self, tmp):
        a, b, ta, tb, mu, den = tmp + 10, tmp + 14, tmp, tmp + 1, tmp + 6, tmp + 7
        return [f'v_mul_f32 {vr(ta)}, {f2u(1 / 288):#x}, {vr(a)}', f'v_mul_f32 {vr(tb)}, {f2u(1 / 288):#x}, {vr(b)}',
                f'v_fma_f32 {vr(a + 1)}, -{vr(ta)}, {vr(a)}, {vr(a + 1)}', f'v_fma_f32 {vr(b + 1)}, -{vr(tb)}, {vr(b)}, {vr(b + 1)}',
                f'v_add_f32 {vr(ta)}, {vr(ta)}, {vr(a + 2)}', f'v_add_f32 {vr(tb)}, {vr(tb)}, {vr(b + 2)}',
                f'v_add_f32 {vr(a + 1)}, {vr(a + 1)}, {vr(b + 1)}', f'v_sub_f32 {vr(a)}, {vr(ta)}, {vr(tb)}',
                f'v_add_f32 {vr(ta)}, {vr(ta)}, {vr(tb)}', f'v_mul_f32 {vr(b)}, {f2u(144.0):#x}, {vr(a)}',
                f'v_mul_f32 {vr(ta)}, 0.5, {vr(ta)}', f'v_fmac_f32 {vr(a + 1)}, {vr(b)}, {vr(a)}',
                f'v_mul_f32 {vr(a + 1)}, {f2u(1 / 576):#x}, {vr(a + 1)}', f'v_max_f32 {vr(a + 1)}, 0, {vr(a + 1)}',
                f'v_cvt_pk_bf16_f32 {vr(ta)}, {vr(ta)}, {vr(a + 1)}',
                f'v_and_b32 {vr(den)}, 0xffff0000, {vr(ta)}', f'v_lshlrev_b32 {vr(mu)}, 16, {vr(ta)}',
                f'v_add_f32 {vr(den)}, {f2u(1e-5):#x}, {vr(den)}', f'v_cvt_pk_bf16_f32 {vr(den)}, {vr(den)}, {vr(den)}',
                f'v_lshlrev_b32 {vr(den)}, 16, {vr(den)}', f'v_sqrt_f32 {vr(den)}, {vr(den)}',
                f'v_cvt_pk_bf16_f32 {vr(den)}, {vr(den)}, {vr(den)}', f'v_lshlrev_b32 {vr(den)}, 16, {vr(den)}', f'v_rcp_f32 {vr(den)}, {vr(den)}']

    def layernorm(self, h, tmp, mid=None, pre=None):
        A = self.A
        d = tmp
        self.ln_stage1(h, tmp)
        if pre:
            pre()
        A('s_waitcnt lgkmcnt(0)', 's_barrier')
        a, b = tmp + 10, tmp + 14
        A(f'ds_read_b96 {vr(a, 3)}, {vStR}', f'ds_read_b96 {vr(b, 3)}, {vStR} offset:16')
        if mid:
            mid()
        A(f's_mov_b32 s48, {f2u(1 / 288):#x}', f's_mov_b32 s49, {f2u(144.0):#x}', f's_waitcnt lgkmcnt({10 if mid else 0})')
        ta, tb = tmp, tmp + 1
        A(f'v_mul_f32 {vr(ta)}, s48, {vr(a)}', f'v_mul_f32 {vr(tb)}, s48, {vr(b)}')
        A(f'v_fma_f32 {vr(a + 1)}, -{vr(ta)}, {vr(a)}, {vr(a + 1)}', f'v_fma_f32 {vr(b + 1)}, -{vr(tb)}, {vr(b)}, {vr(b + 1)}')
        A(f'v_add_f32 {vr(ta)}, {vr(ta)}, {vr(a + 2)}', f'v_add_f32 {vr(tb)}, {vr(tb)}, {vr(b + 2)}')
        A(f'v_add_f32 {vr(a + 1)}, {vr(a + 1)}, {vr(b + 1)}', f'v_sub_f32 {vr(a)}, {vr(ta)}, {vr(tb)}')
        A(f'v_add_f32 {vr(ta)}, {vr(ta)}, {vr(tb)}', f'v_mul_f32 {vr(b)}, s49, {vr(a)}')
        A(f'v_mul_f32 {vr(ta)}, 0.5, {vr(ta)}', f'v_fmac_f32 {vr(a + 1)}, {vr(b)}, {vr(a)}')
        A(f's_mov_b32 s48, {f2u(1 / 576):#x}', f's_mov_b32 s49, {f2u(1e-5):#x}')
        A(f'v_mul_f32 {vr(a + 1)}, s48, {vr(a + 1)}', f'v_max_f32 {vr(a + 1)}, 0, {vr(a + 1)}')
        A(f'v_cvt_pk_bf16_f32 {vr(ta)}, {vr(ta)}, {vr(a + 1)}')
        mu, den = tmp + 6, tmp + 7
        A(f'v_and_b32 {vr(den)}, 0xffff0000, {vr(ta)}', f'v_lshlrev_b32 {vr(mu)}, 16, {vr(ta)}')
        A(f'v_add_f32 {vr(den)}, s49, {vr(den)}')
        for k in range(5):
            A(f'v_sub_f32 {vr(d + k)}, {vr(h + k)}, {vr(mu)}')
            if k == 0:
                A(f'v_cvt_pk_bf16_f32 {vr(den)}, {vr(den)}, {vr(den)}')
            if k == 1:
                A(f'v_lshlrev_b32 {vr(den)}, 16, {vr(den)}')
            if k == 2:
                A(f'v_sqrt_f32 {vr(den)}, {vr(den)}')
        A(f'v_cvt_pk_bf16_f32 {vr(den)}, {vr(den)}, {vr(den)}')
        A(f'v_cvt_pk_bf16_f32 {vr(d + 1)}, {vr(d)}, {vr(d + 1)}')
        A(f'v_lshlrev_b32 {vr(den)}, 16, {vr(den)}')
        A(f'v_cvt_pk_bf16_f32 {vr(d + 3)}, {vr(d + 2)}, {vr(d + 3)}')
        A(f'v_rcp_f32 {vr(den)}, {vr(den)}')
        A(f'v_cvt_pk_bf16_f32 {vr(d + 4)}, {vr(d + 4)}, {vr(d + 4)}')
        A(f'v_lshlrev_b32 {vr(d)}, 16, {vr(d + 1)}', f'v_and_b32 {vr(d + 1)}, 0xffff0000, {vr(d + 1)}')
        A(f'v_lshlrev_b32 {vr(d + 2)}, 16, {vr(d + 3)}', f'v_and_b32 {vr(d + 3)}, 0xffff0000, {vr(d + 3)}')
        A(f'v_lshlrev_b32 {vr(d + 4)}, 16, {vr(d + 4)}')
        for k in range(5):
            A(f'v_mul_f32 {vr(d + k)}, {vr(d + k)}, {vr(den)}')
        o = tmp + 10
        A(f'v_cvt_pk_bf16_f32 {vr(o)}, {vr(d)}, {vr(d + 1)}', f'v_cvt_pk_bf16_f32 {vr(o + 1)}, {vr(d + 2)}, {vr(d + 3)}')
        A(f'v_cvt_pk_bf16_f32 {vr(o + 2)}, {vr(d + 4)}, {vr(d + 4)}')
        A(f'ds_write_b64 {vHNo}, {vr(o, 2)}', f'ds_write_b16 {vHNe}, {vr(o + 2)}')
        A('s_waitcnt lgkmcnt(0)', 's_barrier')

    def wait2(self, n_stream, n_help):
        A = self.A
        la, lb = self.lab('w'), self.lab('w')
        A(f's_cmp_eq_u32 {sH}, 0', f's_cbranch_scc1 {la}', f's_waitcnt vmcnt({n_help})', f's_branch {lb}')
        A.label(la)
        A(f's_waitcnt vmcnt({n_stream})')
        A.label(lb)

    def poll(self, issue, check, nops, ok, timeout=None, first_issued=False, sleep=0):
        A, D = self.A, self.pd
        top = self.lab('poll')
        A(f's_mov_b32 {sSpin}, {self.spin}')
        for k in range(D):
            if k or not first_issued:
                if k and self.pst:
                    A(f's_sleep {self.pst}')
                issue(k)
        A.label(top)
        for k in range(D):
            A(f's_waitcnt vmcnt({(D - 1) * nops})')
            check(k)
            if k == D - 1:
                A(f's_sub_u32 {sSpin}, {sSpin}, 1', f's_cbranch_scc1 {timeout or ok}')
            if sleep:
                A(f's_sleep {sleep}')
            issue(k)
        A(f's_branch {top}')

    def spin_end(self, retry, ok):
        A = self.A
        A(f's_cbranch_vccz {ok}', f's_sub_u32 {sSpin}, {sSpin}, 1', f's_cbranch_scc0 {retry}')

    def head(self):
        A, vm = self.A, self.vm
        A('s_cmp_ge_u32 s2, 256', 's_cbranch_scc1 L_end')
        A('s_load_dwordx2 s[16:17], s[0:1], 0', 's_load_dwordx2 s[20:21], s[0:1], 24', 's_load_dwordx2 s[12:13], s[0:1], 88')
        A('s_load_dwordx2 s[4:5], s[0:1], 8', 's_load_dwordx2 s[8:9], s[0:1], 16')
        A(f's_getpc_b64 {sPC}')
        A.label('L_pc')
        A(f's_sub_u32 s46, s46, L_pc-{KNAME}', 's_subb_u32 s47, s47, 0')
        A(f'v_lshlrev_b32 {vPf}, 7, v0', f'v_min_u32 {vPf}, L_codeend-{KNAME}-4, {vPf}')
        vm.op(f'global_load_dword v255, {vPf}, {sPC}')
        A('s_load_dwordx2 s[24:25], s[0:1], 64', 's_load_dwordx2 s[28:29], s[0:1], 72')
        A('s_load_dwordx2 s[94:95], s[0:1], 32', 's_load_dwordx4 s[96:99], s[0:1], 48')
        self.stamp(0)
        A(f'v_lshrrev_b32 v2, 6, v0', f'v_and_b32 {vLane}, 63, v0', f'v_readfirstlane_b32 {sW}, v2')
        A(f's_cmp_lt_u32 {sW}, 2', f's_cselect_b32 {sH}, 0, 1')
        for base, size in ((6, 0x10000000), (10, 0x10000000), (14, WS_BYTES), (18, 2304), (22, 576 * 8192), (26, 4608 * 1152), (30, 2304)):
            A(f's_mov_b32 s{base}, {size:#x}', f's_mov_b32 s{base + 1}, 0x20000')
        A(f's_and_b32 {sS}, s2, 7', 's_lshr_b32 s55, s2, 3', f's_and_b32 {sB}, s55, 1', f's_lshr_b32 {sG}, s55, 1')
        A(f's_lshr_b32 s58, {sW}, 1', 's_mul_i32 s56, s58, 1152', f's_and_b32 s59, {sW}, 1')
        A('s_lshl_b32 s57, s59, 6', 's_add_u32 s57, s57, s56', 's_add_u32 s57, s57, 1024')
        A('s_lshl_b32 s60, s59, 9', 's_add_u32 s56, s56, s60')
        t = T0
        A(f'v_lshlrev_b32 {vr(t)}, 3, {vLane}', f'v_and_b32 {vr(t + 1)}, 31, {vLane}', f'v_lshlrev_b32 {vr(t + 1)}, 1, {vr(t + 1)}')
        A(f'v_lshrrev_b32 {vr(t + 2)}, 3, {vLane}', f'v_lshlrev_b32 {vr(t + 2)}, 13, {vr(t + 2)}')
        A(f'v_bfe_u32 {vr(t + 3)}, {vLane}, 4, 1', 's_lshl_b32 s60, s59, 1', f'v_or_b32 {vr(t + 3)}, s60, {vr(t + 3)}', f'v_lshlrev_b32 {vr(t + 3)}, 1, {vr(t + 3)}')
        A(f'v_and_b32 {vr(t + 4)}, 7, {vLane}', f'v_xor_b32 {vr(t + 3)}, {vr(t + 3)}, {vr(t + 4)}', f'v_lshl_or_b32 {vr(t + 2)}, {vr(t + 3)}, 4, {vr(t + 2)}')
        A('s_and_b32 s58, s2, 3', 's_lshr_b32 s62, s2, 2', 's_lshl_b32 s62, s62, 7', 's_lshl_b32 s60, s58, 18', 's_add_u32 s62, s62, s60')
        A(f's_lshl_b32 s60, {sW}, 16', 's_add_u32 s62, s62, s60', f's_lshl_b32 s63, {sW}, 10')
        A(f'v_mov_b32 {vr(t + 3)}, 0')
        if self.kfirst:
            self.stream_addr()
        A('s_waitcnt lgkmcnt(0)')
        if self.kfirst:
            self.start_stream(False)
        vm.op(f'buffer_load_dwordx2 {vr(vXo, 2)}, {vr(t)}, {X_SRD}, s56 offen', 'x')
        vm.op(f'buffer_load_ushort {vr(vXo + 2)}, {vr(t + 1)}, {X_SRD}, s57 offen', 'x')
        vm.op(f'buffer_load_dword {vr(t + 8)}, {vr(t + 3)}, {WS_SRD}, 0 offen sc1', 'ep')
        l3 = self.lab('wq')
        for j in range(5):
            if j == 4:
                A('s_cmp_lt_u32 s58, 2', f's_cbranch_scc0 {l3}')
            A('s_mov_b32 m0, s63')
            txt = f'buffer_load_dwordx4 {vr(t + 2)}, {WA_SRD}, s62 offen {self.wpol} lds'
            vm.op(txt, 'wq') if j < 4 else A(txt)
            A('s_add_u32 s62, s62, 0x100000', 's_add_u32 s63, s63, 4096')
        A.label(l3)
        if not self.kfirst:
            self.start_stream(True)
        self.setup_early()
        self.prefill()
        self.wait2(5 + (0 if self.kfirst else 4 * self.npre), 7)
        h = T0 + 16
        A(f'v_lshlrev_b32 {vr(h)}, 16, {vr(vXo)}', f'v_and_b32 {vr(h + 1)}, 0xffff0000, {vr(vXo)}')
        A(f'v_lshlrev_b32 {vr(h + 2)}, 16, {vr(vXo + 1)}', f'v_and_b32 {vr(h + 3)}, 0xffff0000, {vr(vXo + 1)}')
        A(f'v_lshlrev_b32 {vr(h + 4)}, 16, {vr(vXo + 2)}')

        def wq_wait():
            self.wait2(0 if self.kfirst else 4 * self.npre, 0)
            A(f'v_readfirstlane_b32 {sTag}, {vr(t + 8)}')
            A(f's_mul_i32 {sTag}, {sTag}, 0x9E3779B1', f's_add_u32 {sTag}, {sTag}, 0x7F4A7C15')

        a0, b0, d0 = T0 + 48, T0 + 68, T0 + 88

        def wq_reads():
            for j in range(5):
                for u in range(2):
                    A(f'ds_read_b64_tr_b16 {vr(b0 + 4 * j + 2 * u, 2)}, {vr(T0 + 11)} offset:{j * 4096 + u * 512}')
        self.layernorm(h, T0 + 24, mid=wq_reads, pre=wq_wait)
        for j in range(5):
            A(f'ds_read_b128 {vr(a0 + 4 * j, 4)}, {vr(T0 + 10)} offset:{j * 256}')
        for j in range(4):
            A(f's_waitcnt lgkmcnt({4 - j})')
            A(f'v_mfma_f32_16x16x32_bf16 {vr(d0, 4)}, {vr(a0 + 4 * j, 4)}, {vr(b0 + 4 * j, 4)}, ' + ('0' if j == 0 else vr(d0, 4)))
        l4 = self.lab('q')
        A('s_waitcnt lgkmcnt(0)', 's_and_b32 s60, s2, 3', 's_cmp_lt_u32 s60, 2', f's_cbranch_scc0 {l4}')
        A(f'v_mfma_f32_16x16x32_bf16 {vr(d0, 4)}, {vr(a0 + 16, 4)}, {vr(b0 + 16, 4)}, {vr(d0, 4)}')
        A.label(l4)
        A(f'v_mov_b32 {vr(a0 + 1)}, {sTag}', f'v_mov_b32 {vr(a0 + 3)}, {sTag}', 's_mov_b32 s60, 0x20000', 's_nop 4')
        A(f'v_mov_b32 {vr(a0)}, {vr(d0)}', f'v_mov_b32 {vr(a0 + 2)}, {vr(d0 + 1)}', 's_mov_b64 exec, 0xffff')
        A(f'buffer_store_dwordx2 {vr(a0, 2)}, {vQw}, {WS_SRD}, 0 offen sc1', f'buffer_store_dwordx2 {vr(a0 + 2, 2)}, {vQw}, {WS_SRD}, s60 offen sc1')
        A('s_mov_b64 exec, -1')
        self.stamp(1)
        A(f's_mov_b32 {sSpin}, {self.spin}')
        l5, l6 = self.lab('hq'), self.lab('hq')
        A(f's_cmp_eq_u32 {sH}, 0', f's_cbranch_scc0 {l5}')
        for n in range(self.npre, 7):
            if n == 4:
                A(f's_add_u32 {sT}, {sT}, 131072')
            self.piece(n, track=False)
        self.setup_consts()
        self.setup_roles()
        A(f's_branch {l6}')
        A.label(l5)
        qp = T0 + 48
        A(f's_lshl_b32 s60, {sB}, 17', f's_lshl_b32 s61, {sG}, 13', 's_add_u32 s60, s60, s61', 's_lshl_b32 s61, s59, 12', 's_add_u32 s60, s60, s61')
        A(f's_add_u32 s60, s60, {QBUF}', f'v_lshrrev_b32 {vQg}, 5, {vLane}', f'v_lshlrev_b32 {vQg}, 11, {vQg}', f'v_and_b32 {vr(qp)}, 31, {vLane}')
        A(f'v_lshl_add_u32 {vQg}, {vr(qp)}, 4, {vQg}', f'v_add_u32 {vQg}, s60, {vQg}')

        def qloads():
            for k in range(4):
                A(f'buffer_load_dwordx4 {vr(qp + 4 * k, 4)}, {vQg}, {WS_SRD}, 0 offen offset:{512 * k} sc1')
        lf, li, lc = self.lab('hf'), self.lab('hi'), self.lab('hc')
        A(f's_cmp_eq_u32 {sRole}, 0', f's_cbranch_scc0 {lf}')
        self.setup_dma_t2()
        self.dma_t2(0, self.ao, 0)
        qloads()
        self.dma_t2(self.ao, self.bo, 0)
        A(f's_waitcnt vmcnt({3 * (self.bo - self.ao)})', f's_branch {lc}')
        A.label(lf)
        A(f's_cmp_eq_u32 {sRole}, 1', f's_cbranch_scc0 {li}')
        self.setup_dma_ffn()
        self.dma_w13(0, self.a13, 0)
        qloads()
        self.dma_w13(self.a13, self.b13, 0)
        A(f's_waitcnt vmcnt({2 * (self.b13 - self.a13)})', f's_branch {lc}')
        A.label(li)
        qloads()
        A('s_waitcnt vmcnt(0)')
        chk, ok = lc, self.lab('qok')
        A.label(chk)
        for k in range(8):
            A(f'v_xor_b32 {vr(qp + 16 + k)}, {sTag}, {vr(qp + 2 * k + 1)}')
        A(f'v_or3_b32 {vr(qp + 16)}, {vr(qp + 16)}, {vr(qp + 17)}, {vr(qp + 18)}', f'v_or3_b32 {vr(qp + 19)}, {vr(qp + 19)}, {vr(qp + 20)}, {vr(qp + 21)}')
        A(f'v_or3_b32 {vr(qp + 16)}, {vr(qp + 16)}, {vr(qp + 22)}, {vr(qp + 23)}', f'v_or_b32 {vr(qp + 16)}, {vr(qp + 16)}, {vr(qp + 19)}')
        A(f'v_cmp_ne_u32 vcc, 0, {vr(qp + 16)}')
        A(f's_cbranch_vccz {ok}', f's_sub_u32 {sSpin}, {sSpin}, 1', f's_cbranch_scc1 {ok}')
        qloads()
        A('s_waitcnt vmcnt(0)', f's_branch {chk}')
        A.label(ok)
        for c in range(2):
            o = qp + 2 * c
            A(f'v_add_f32 {vr(o)}, {vr(o)}, {vr(o + 4)}', f'v_add_f32 {vr(o + 8)}, {vr(o + 8)}, {vr(o + 12)}', f'v_add_f32 {vr(o)}, {vr(o)}, {vr(o + 8)}')
        A(f'v_cvt_pk_bf16_f32 {vr(qp)}, {vr(qp)}, {vr(qp + 2)}')
        A(f's_lshl_b32 s60, {sW}, 8', f's_add_u32 s60, s60, {QL - 512}', f'v_lshl_add_u32 {vr(qp + 1)}, {vLane}, 2, s60')
        A(f'ds_write_b32 {vr(qp + 1)}, {vr(qp)}', 's_waitcnt lgkmcnt(0)')
        A.label(l6)
        A('s_barrier')
        self.stamp(2)

    def start_stream(self, with_addr):
        A = self.A
        ls = self.lab('st')
        if with_addr:
            self.stream_addr()
        A(f's_cmp_eq_u32 {sH}, 0', f's_cbranch_scc0 {ls}')
        for n in range(self.npre):
            if n == 4:
                A(f's_add_u32 {sT}, {sT}, 131072')
            self.piece(n, track=False)
        A.label(ls)

    def stream_addr(self):
        A = self.A
        A(f'v_bfe_u32 {vK0}, {vLane}, 2, 2', f'v_lshlrev_b32 {vK0}, 8, {vK0}', f'v_lshrrev_b32 {vK1}, 4, {vLane}')
        A(f'v_lshl_or_b32 {vK0}, {vK1}, 6, {vK0}', f'v_and_b32 {vK1}, 3, {vLane}', f'v_lshl_or_b32 {vK0}, {vK1}, 4, {vK0}')
        A(f'v_add_u32 {vK1}, 4096, {vK0}', f'v_lshlrev_b32 {vV0}, 4, {vLane}', f'v_add_u32 {vV1}, 4096, {vV0}')
        A(f's_lshl_b32 {sPool}, {sB}, 4', f's_add_u32 {sPool}, {sPool}, {sG}', f's_lshl_b32 {sPool}, {sPool}, 23')
        A(f's_lshl_b32 s60, {sS}, 1', f's_add_u32 s60, s60, {sW}', 's_lshl_b32 s60, s60, 13', f's_add_u32 {sT}, {sPool}, s60')
        A(f's_add_u32 {sPool}, {sPool}, {self.NS * 131072}')

    def setup_early(self):
        A = self.A
        t = T0 + 4
        g, r, c, j = 250, 251, 252, 253
        self.fields = (g, r, c, j)
        A(f'v_lshrrev_b32 {vr(g)}, 4, {vLane}', f'v_bfe_u32 {vr(r)}, {vLane}, 2, 2', f'v_and_b32 {vr(c)}, 3, {vLane}', f'v_and_b32 {vr(j)}, 15, {vLane}')
        A(f's_add_u32 s60, s56, {HN}', f'v_lshl_add_u32 {vHNo}, {vLane}, 3, s60')
        A(f'v_and_b32 {vr(t)}, 31, {vLane}', f's_add_u32 s60, s57, {HN}', f'v_lshl_add_u32 {vHNe}, {vr(t)}, 1, s60')
        A(f's_lshl_b32 s60, {sW}, 4', f's_add_u32 s60, s60, {STAT}', f'v_mov_b32 {vStW}, s60')
        A(f's_lshr_b32 s60, {sW}, 1', 's_lshl_b32 s60, s60, 5', f's_add_u32 s60, s60, {STAT}', f'v_mov_b32 {vStR}, s60')
        A(f'v_and_b32 {vr(t)}, 1, {vLane}', f'v_mul_u32_u24 {vr(t)}, 1152, {vr(t)}', f'v_lshl_add_u32 {vr(t)}, {vr(g)}, 4, {vr(t)}')
        A(f'v_add_u32 {vHNa}, {HN}, {vr(t)}')
        A('s_lshl_b32 s60, s58, 6', f'v_add_u32 {vr(T0 + 10)}, s60, {vHNa}')
        A(f'v_lshrrev_b32 {vr(t)}, 1, {vr(r)}', f'v_and_b32 {vr(t + 1)}, 1, {vr(g)}', f'v_lshl_or_b32 {vr(t)}, {vr(t + 1)}, 1, {vr(t)}')
        A(f'v_xor_b32 {vr(t)}, {sW}, {vr(t)}', f'v_lshlrev_b32 {vr(t)}, 5, {vr(t)}', f'v_lshl_add_u32 {vr(t)}, {vr(c)}, 3, {vr(t)}')
        A(f'v_lshl_add_u32 {vr(t + 1)}, {vr(g)}, 3, {vr(r)}', f'v_lshl_add_u32 {vr(T0 + 11)}, {vr(t + 1)}, 7, {vr(t)}')
        A('s_lshl_b32 s60, s2, 9', f's_lshl_b32 s61, {sW}, 7', 's_add_u32 s60, s60, s61', f's_add_u32 s60, s60, {QBUF}', f'v_lshl_add_u32 {vQw}, {vr(j)}, 3, s60')
        A(f's_lshl_b32 s60, {sS}, 2', 's_add_u32 s60, s60, s55', 's_and_b32 s60, s60, 31')
        lr, lq = self.lab('role'), self.lab('role')
        A('s_and_b32 s61, s60, 3', 's_lshr_b32 s60, s60, 2', 's_cmp_lt_u32 s61, 2', f's_cbranch_scc0 {lq}')
        A('s_mul_i32 s62, s61, 5', 's_lshl_b32 s63, s61, 1', 's_sub_u32 s63, s63, 5', 's_mov_b32 s61, 5', f's_branch {lq}x')
        A.label(lq)
        A('s_lshl_b32 s62, s61, 2', 's_sub_u32 s63, s62, 8', 's_add_u32 s62, s62, 2', 's_mov_b32 s61, 4')
        A.label(lq + 'x')
        A(f's_mov_b32 {sRole}, 1', f's_mul_i32 {sGF}, {sS}, 18', f's_add_u32 {sGF}, {sGF}, s62', f's_add_u32 {sGF}, {sGF}, s60', f's_mov_b32 {sN}, s61')
        A('s_cmp_lt_u32 s60, s61', f's_cbranch_scc1 {lr}')
        A(f's_mov_b32 {sRole}, 0', f's_mov_b32 {sGF}, {sS}', f's_add_u32 {sN}, s63, s60', 's_add_u32 s60, s60, s61', 's_cmp_eq_u32 s60, 12', f's_cbranch_scc0 {lr}')
        A(f's_mov_b32 {sRole}, 2')
        A.label(lr)
        A(f's_lshl_b32 s60, {sG}, 1', 's_add_u32 s60, s60, s59', f's_lshl_b32 s61, {sB}, 3', f's_add_u32 s61, s61, {sS}')
        A('s_lshl_b32 s62, s60, 12', 's_lshl_b32 s63, s61, 8', 's_add_u32 s62, s62, s63', f's_add_u32 s62, s62, {OBUF}')
        A(f'v_lshl_add_u32 {vOad}, {vLane}, 2, s62')
        A('s_lshl_b32 s62, s60, 4', 's_add_u32 s62, s62, s61', f's_mul_i32 s62, s62, {self.sstr}', f's_add_u32 s62, s62, {SBUF}')
        A(f'v_mov_b32 {vSad}, s62')
        A('s_lshl_b32 s60, s55, 8', f's_add_u32 s60, s60, {CNT}', f'v_mov_b32 {vCa}, s60')
        A(f'v_mov_b32 {vr(t)}, {CTR}', f'v_mov_b32 {vr(t + 1)}, 0', f'ds_write_b32 {vr(t)}, {vr(t + 1)}')

    def prefill(self, again=False):
        A = self.A
        t = T0
        l0, l1, l2 = self.lab('pf'), self.lab('pf'), self.lab('pf')
        A(f's_cmp_eq_u32 {sH}, 0', f's_cbranch_scc1 {l2}')
        for k in range(4):
            A(f'v_mov_b32 {vr(t + 4 + k)}, -1')
        A(f'buffer_store_dword {vr(t + 4)}, {vOad}, {WS_SRD}, 0 offen sc1')
        A(f'buffer_store_dwordx2 {vr(t + 4, 2)}, {vSad}, {WS_SRD}, 0 offen sc1')
        if not again:
            A(f's_or_b32 s60, {sS}, s59', 's_cmp_eq_u32 s60, 0', f's_cbranch_scc0 {l0}')
            A(f'buffer_store_dword {vr(t + 3)}, {vCa}, {WS_SRD}, 0 offen sc1')
            A.label(l0)
        A(f's_cmp_eq_u32 {sRole}, 0', f's_cbranch_scc0 {l1}')
        A(f's_mul_i32 s60, {sGF}, 4608', 's_mul_i32 s61, s59, 2304', 's_add_u32 s60, s60, s61', f's_mul_i32 s61, {sN}, 192')
        A('s_add_u32 s60, s60, s61', f's_add_u32 s60, s60, {ABUF}', f'v_lshlrev_b32 {vr(t + 9)}, 2, {vLane}')
        A('s_mov_b32 exec_hi, 0xffff')
        A(f'buffer_store_dword {vr(t + 4)}, {vr(t + 9)}, {WS_SRD}, s60 offen sc1')
        A('s_mov_b64 exec, -1')
        A.label(l1)
        A(f's_cmp_eq_u32 {sRole}, 1', f's_cbranch_scc0 {l2}')
        A(f's_lshl_b32 s60, {sGF}, 7', f's_mul_i32 s61, s59, {18 * 18432}', 's_add_u32 s60, s60, s61', f's_add_u32 s60, s60, {FBUF}')
        A(f'v_lshrrev_b32 {vr(t + 9)}, 3, {vLane}', f'v_mul_u32_u24 {vr(t + 9)}, 18432, {vr(t + 9)}', f'v_and_b32 {vr(t + 2)}, 7, {vLane}', f'v_lshl_add_u32 {vr(t + 9)}, {vr(t + 2)}, 4, {vr(t + 9)}')
        for k in range(3):
            if k == 2:
                A('s_mov_b64 exec, 0xffff')
            A(f'buffer_store_dwordx4 {vr(t + 4, 4)}, {vr(t + 9)}, {WS_SRD}, s60 offen sc1', f's_add_u32 s60, s60, {8 * 18432}')
        A('s_mov_b64 exec, -1')
        A.label(l2)

    def setup_consts(self):
        A = self.A
        t = T0 + 4
        A(f's_mov_b32 {sScale}, {f2u(128 ** -0.5):#x}', f's_mov_b32 {sL2e}, {f2u(1.4426950408889634):#x}')
        for m, v in ((40, 0x22222222), (42, 0x44444444), (44, 0x88888888), (74, 0xff00ff00)):
            A(f's_mov_b32 s{m}, {v:#x}', f's_mov_b32 s{m + 1}, {v:#x}')
        A('s_mov_b32 s72, 0', 's_mov_b32 s73, -1')
        A(f'v_mov_b32 {vM}, 0xff800000', f'v_mov_b32 {vL}, 0')
        for r in range(4):
            A(f'v_mov_b32 {vr(ACC + r)}, 0')
        A(f'v_bfe_u32 {vr(t)}, {vLane}, 3, 1', f'v_mul_u32_u24 {vr(t)}, 0x202, {vr(t)}', f'v_add_u32 {vr(t)}, 0x100, {vr(t)}')
        A(f'v_or_b32 {vr(t + 1)}, 0x0c0c0000, {vr(t)}', f'v_lshlrev_b32 {vr(t)}, 16, {vr(t)}', f'v_or_b32 {vr(t)}, 0x0c0c, {vr(t)}')
        A(f'v_and_b32 {vr(t + 2)}, 1, {vLane}', f'v_cmp_eq_u32 vcc, 1, {vr(t + 2)}', f'v_cndmask_b32 {vr(t)}, {vr(t + 1)}, {vr(t)}, vcc')
        A(f'v_bfe_u32 {vr(t + 1)}, {vLane}, 1, 2', f'v_mov_b32 {vr(t + 2)}, 0x0c0c0c0c')
        for d in range(4):
            A(f'v_cmp_eq_u32 vcc, {d}, {vr(t + 1)}', f'v_cndmask_b32 {vr(SEL + d)}, {vr(t + 2)}, {vr(t)}, vcc')
        g, r, c, j = self.fields
        A(f'v_and_b32 {vr(t)}, 1, {vr(r)}', f'v_lshlrev_b32 {vr(t)}, 8, {vr(t)}', f'v_lshl_add_u32 {vr(t)}, {vr(g)}, 6, {vr(t)}')
        A(f'v_lshl_add_u32 {vr(t)}, {vr(c)}, 4, {vr(t)}', f'v_add_u32 {vQr}, {QL}, {vr(t)}')
        A(f'v_lshrrev_b32 {vr(t)}, 1, {vr(g)}', f'v_lshlrev_b32 {vr(t + 1)}, 9, {vr(t)}', f'v_lshl_add_u32 {vr(t + 1)}, {vr(j)}, 5, {vr(t + 1)}')
        A(f'v_and_b32 {vr(t + 2)}, 1, {vr(g)}', f'v_lshl_add_u32 {vr(t + 1)}, {vr(t + 2)}, 4, {vr(t + 1)}')
        A(f's_lshl_b32 s60, {sW}, 10', f's_add_u32 s60, s60, {CMB}', f'v_add_u32 {vCmbW}, s60, {vr(t + 1)}')
        A(f'v_lshlrev_b32 {vr(t)}, 3, {vr(t)}', f'v_add_u32 {vMstR}, {MST}, {vr(t)}')
        A(f's_lshl_b32 s60, {sW}, 4', f'v_add_u32 {vMstO}, s60, {vMstR}')
        A(f'v_bfe_u32 {vr(t)}, {vLane}, 2, 1', f'v_lshlrev_b32 {vr(t)}, 3, {vr(t)}', f's_add_u32 s60, s60, {MST}', f'v_add_u32 {vMstW}, s60, {vr(t)}')
        A(f'v_lshlrev_b32 {vr(t)}, 7, {vr(g)}', f'v_bfe_u32 {vr(t + 1)}, {vLane}, 1, 1', f'v_lshl_add_u32 {vr(t)}, {vr(t + 1)}, 6, {vr(t)}')
        A(f'v_lshl_add_u32 {vr(t)}, {vr(r)}, 4, {vr(t)}', f'v_and_b32 {vr(t + 1)}, 1, {vLane}', f'v_lshl_add_u32 {vr(t)}, {vr(t + 1)}, 3, {vr(t)}')
        A('s_lshl_b32 s60, s59, 9', f's_add_u32 s60, s60, {CMB}', f'v_add_u32 {vCmbR}, s60, {vr(t)}')

    def setup_dma_t2(self):
        A = self.A
        t = T0 + 4
        A('s_mov_b32 s20, s94', 's_mov_b32 s21, s95', f's_mov_b32 s22, {4096 * 1152}', 's_mov_b32 s23, 0x20000')
        for i in range(3):
            A(f'v_add_u32 {vr(t)}, {64 * i}, {vLane}', f'v_mul_u32_u24 {vr(t + 1)}, 171, {vr(t)}', f'v_lshrrev_b32 {vr(t + 1)}, 10, {vr(t + 1)}')
            A(f'v_mul_u32_u24 {vr(t + 2)}, 1056, {vr(t + 1)}', f'v_lshl_add_u32 {vr(RA + i)}, {vr(t)}, 4, {vr(t + 2)}')
        A(f's_lshl_b32 s61, {sGF}, 2', 's_lshl_b32 s62, s59, 1', 's_add_u32 s61, s61, s62')
        A(f's_mul_i32 s77, s61, {128 * 1152}', f's_mul_i32 s60, {sN}, 96', 's_add_u32 s77, s77, s60')
        A('s_mul_i32 s78, s59, 24576')

    def setup_dma_ffn(self):
        A = self.A
        g, r, c, j = self.fields
        t = T0 + 4
        A('s_mov_b32 s20, s96', 's_mov_b32 s21, s97', 's_mov_b32 s64, s98', 's_mov_b32 s65, s99')
        A(f's_mov_b32 s22, {576 * 9216}', 's_mov_b32 s23, 0x20000', f's_mov_b32 s66, {576 * 9216}', 's_mov_b32 s67, 0x20000')
        A('s_lshl_b32 s60, s59, 4', f'v_lshrrev_b32 {vr(t)}, 2, {vLane}', f'v_add_u32 {vr(t)}, s60, {vr(t)}')
        A(f'v_bfe_u32 {vr(t + 1)}, {vr(t)}, 3, 1', f'v_xor_b32 {vr(t + 1)}, {vr(c)}, {vr(t + 1)}', f'v_mul_u32_u24 {vr(t)}, 9216, {vr(t)}')
        A(f'v_lshl_add_u32 {vr(HA)}, {vr(t + 1)}, 4, {vr(t)}', f'v_xor_b32 {vr(HA + 1)}, 32, {vr(HA)}')
        A(f's_lshl_b32 s77, {sGF}, 6', 's_lshl_b32 s78, s59, 10')

    def setup_w2(self):
        A = self.A
        t = T0 + 4
        A('s_mul_i32 s60, s59, 1152')
        for i in range(18):
            A(f's_add_u32 s61, s60, {64 * i}', f'v_add_u32 {vr(t)}, s61, {vLane}')
            A(f'v_mul_u32_u24 {vr(t + 1)}, 14564, {vr(t)}', f'v_lshrrev_b32 {vr(t + 1)}, 20, {vr(t + 1)}')
            A(f'v_and_b32 {vr(t + 2)}, 2, {vr(t + 1)}', f'v_bfe_u32 {vr(t + 1)}, {vr(t + 1)}, 3, 1', f'v_lshl_or_b32 {vr(t + 1)}, {vr(t + 1)}, 2, {vr(t + 2)}')
            A(f'v_xor_b32 {vr(t)}, {vr(t)}, {vr(t + 1)}', f'v_lshlrev_b32 {vr(HA + 2 + i)}, 4, {vr(t)}')

    def setup_roles(self):
        A = self.A
        g, r, c, j = self.fields
        t = T0 + 4
        lf, le = self.lab('rf'), self.lab('re')
        A(f's_cmp_eq_u32 {sRole}, 0', f's_cbranch_scc0 {lf}')
        A(f'v_lshl_add_u32 {vr(t)}, {vr(g)}, 2, {vr(r)}', f'v_mul_u32_u24 {vr(t)}, 96, {vr(t)}', f'v_lshl_add_u32 {vr(t)}, {vr(c)}, 3, {vr(t)}')
        A(f's_mul_i32 s60, {sW}, 12288', f'v_add_u32 {vr(RA + 3)}, s60, {vr(t)}')
        A(f's_lshl_b32 s61, {sGF}, 2', f's_add_u32 s61, s61, {sW}')
        A(f'v_lshlrev_b32 {vr(t)}, 8, {vr(j)}', f'v_lshl_add_u32 {vr(t)}, {vr(g)}, 4, {vr(t)}')
        A('s_lshl_b32 s60, s61, 12', f's_add_u32 s60, s60, {OBUF}', f'v_add_u32 {vr(RA + 4)}, s60, {vr(t)}')
        A(f'v_lshl_add_u32 {vr(t)}, {vr(g)}, 2, {vr(j)}', f'v_and_b32 {vr(t)}, 7, {vr(t)}', f'v_lshrrev_b32 {vr(t + 1)}, 1, {vr(g)}')
        A(f'v_lshl_add_u32 {vr(t)}, {vr(t + 1)}, 3, {vr(t)}', f's_mul_i32 s60, s61, {16 * self.sstr}', f's_add_u32 s60, s60, {SBUF}', f'v_mad_u32_u24 {vr(RA + 5)}, {vr(t)}, {self.sstr // 2}, 0', f'v_lshl_add_u32 {vr(RA + 5)}, {vr(RA + 5)}, 1, s60')
        A(f'v_mul_u32_u24 {vr(t)}, 192, {vr(t + 1)}', f'v_lshl_add_u32 {vr(t)}, {vr(j)}, 2, {vr(t)}')
        A(f's_mul_i32 s60, {sW}, 384', f's_add_u32 s60, s60, {RED}', f'v_add_u32 {vr(t)}, s60, {vr(t)}', f'v_add_u32 {vr(RA + 7)}, 128, {vr(t)}')
        A(f'v_and_b32 {vr(t + 1)}, 1, {vr(g)}', f'v_lshl_add_u32 {vr(RA + 6)}, {vr(t + 1)}, 6, {vr(t)}')
        A(f's_mul_i32 s60, {sW}, 192', f's_add_u32 s60, s60, {RED}', f'v_lshl_add_u32 {vr(RA + 8)}, {vLane}, 2, s60')
        A(f's_mul_i32 s60, {sGF}, 4608', f's_mul_i32 s62, {sW}, 2304', 's_add_u32 s60, s60, s62', f's_mul_i32 s62, {sN}, 192')
        A('s_add_u32 s60, s60, s62', f's_add_u32 s60, s60, {ABUF}', f'v_lshl_add_u32 {vr(RA + 9)}, {vLane}, 2, s60')
        A(f's_mul_i32 s60, {sGF}, 9', f's_add_u32 s60, s60, {sN}', 's_and_b32 s61, s60, 1', 's_lshr_b32 s60, s60, 1', 's_min_u32 s60, s60, 35')
        A('s_mul_i32 s76, s61, 576', 's_lshl_b32 s62, s60, 4', 's_add_u32 s76, s76, s62')
        A(f'v_and_b32 {vr(t)}, 7, {vLane}', f'v_mul_u32_u24 {vr(t + 1)}, 4608, {vr(t)}', f'v_bfe_u32 {vr(t + 2)}, {vLane}, 3, 2', f'v_lshl_add_u32 {vr(t + 1)}, {vr(t + 2)}, 4, {vr(t + 1)}')
        A('s_lshl_b32 s62, s76, 2', f's_add_u32 s62, s62, {ABUF}', f'v_add_u32 {vr(RA + 10)}, s62, {vr(t + 1)}')
        A(f'v_lshlrev_b32 {vr(RA + 14)}, 4, {vr(t + 2)}', f'v_add_u32 {vr(RA + 14)}, {HRES}, {vr(RA + 14)}')
        A('s_lshl_b32 s62, s76, 1', f'v_lshl_add_u32 {vr(RA + 12)}, {vr(t + 2)}, 3, s62', f'v_lshl_add_u32 {vr(RA + 17)}, {vr(j)}, 1, s62')
        A('s_mul_i32 s62, s60, 43', 's_lshr_b32 s62, s62, 7', f'v_mul_u32_u24 {vr(t)}, 12, {vr(t)}', f'v_add_u32 {vr(t)}, s62, {vr(t)}')
        A(f's_lshl_b32 s62, {sS}, 14', f's_add_u32 s62, s62, {FLAG2}', f'v_lshl_add_u32 {vr(RA + 13)}, {vr(t)}, 7, s62')
        A('s_mul_i32 s60, s60, 18432', 's_lshl_b32 s61, s61, 6', 's_add_u32 s60, s60, s61', f's_mul_i32 s61, {sW}, {36 * 128}', 's_add_u32 s60, s60, s61')
        A(f's_add_u32 s60, s60, {FBUF}', f'v_lshlrev_b32 {vr(t)}, 7, {vr(g)}', f'v_lshl_add_u32 {vr(t)}, {vr(r)}, 7, 0', f'v_lshl_add_u32 {vr(t)}, {vr(g)}, 9, {vr(t)}')
        A(f'v_lshl_add_u32 {vr(t)}, {vr(c)}, 4, {vr(t)}', f'v_add_u32 {vr(RA + 11)}, s60, {vr(t)}')
        A(f's_lshl_b32 s60, {sW}, 8', f's_add_u32 s60, s60, {FIN}', f'v_lshlrev_b32 {vr(t)}, 6, {vr(g)}', f'v_lshl_add_u32 {vr(t)}, {vr(c)}, 4, {vr(t)}', f'v_add_u32 {vr(RA + 15)}, s60, {vr(t)}')
        A(f'v_lshlrev_b32 {vr(t)}, 8, {vr(g)}', f'v_lshl_add_u32 {vr(t)}, {vr(j)}, 2, {vr(t)}', f'v_add_u32 {vr(RA + 16)}, {FIN}, {vr(t)}')
        A(f's_lshl_b32 s60, {sGF}, 1', f's_lshr_b32 s61, {sW}, 1', 's_add_u32 s60, s60, s61', 's_lshl_b32 s60, s60, 11', f's_add_u32 s60, s60, {FLAG1}', f'v_lshl_add_u32 {vr(RA + 19)}, {vr(j)}, 7, s60')
        A(f's_mul_i32 s60, {sGF}, 12', f's_add_u32 s60, s60, {sN}', 's_lshl_b32 s60, s60, 7', f's_add_u32 s60, s60, {FLAG2}', f'v_lshl_add_u32 {vr(RA + 18)}, {vLane}, 14, s60')
        A(f's_branch {le}')
        A.label(lf)
        A(f's_cmp_eq_u32 {sRole}, 1', f's_cbranch_scc0 {le}')
        A(f'v_and_b32 {vr(t)}, 1, {vr(g)}', f'v_and_b32 {vr(t + 1)}, 2, {vr(c)}', f'v_or_b32 {vr(t)}, {vr(t)}, {vr(t + 1)}', f'v_xor_b32 {vr(t)}, {sW}, {vr(t)}')
        A(f'v_lshlrev_b32 {vr(t)}, 4, {vr(t)}', f'v_lshl_add_u32 {vr(t)}, {vr(t + 1)}, 10, {vr(t)}', f'v_and_b32 {vr(t + 1)}, 1, {vr(c)}')
        A(f'v_lshl_add_u32 {vr(t)}, {vr(t + 1)}, 3, {vr(t)}', f'v_lshl_add_u32 {vr(t + 1)}, {vr(g)}, 3, {vr(r)}')
        A(f'v_lshl_add_u32 {vr(RA + 10)}, {vr(t + 1)}, 6, {vr(t)}', f'v_add_u32 {vr(RA + 11)}, 36864, {vr(RA + 10)}')
        A(f'v_mul_u32_u24 {vr(t + 1)}, 1152, {vr(t + 1)}', f'v_lshl_add_u32 {vr(t + 1)}, {vr(c)}, 3, {vr(t + 1)}', f'v_add_u32 {vr(t + 1)}, {LW2}, {vr(t + 1)}')
        A(f'v_lshrrev_b32 {vr(t)}, 1, {vr(r)}', f'v_and_b32 {vr(t + 2)}, 1, {vr(g)}', f'v_lshl_or_b32 {vr(t)}, {vr(t + 2)}, 1, {vr(t)}')
        A(f's_mul_i32 s60, {sW}, 9')
        for m in range(4):
            A(f's_add_u32 s61, s60, {m}', f'v_xor_b32 {vr(t + 2)}, s61, {vr(t)}', f'v_lshl_add_u32 {vr(RA + 12 + m)}, {vr(t + 2)}, 5, {vr(t + 1)}')
        A(f's_lshr_b32 s60, {sW}, 1', 's_mul_i32 s60, s60, 2304', f's_and_b32 s61, {sW}, 1', 's_lshl_b32 s62, s61, 10', 's_add_u32 s62, s62, s60')
        A(f's_add_u32 s62, s62, {ABUF}', f'v_lshl_add_u32 {vr(RA + 16)}, {vLane}, 4, s62')
        A('s_lshl_b32 s62, s61, 7', 's_add_u32 s62, s62, s60', f's_add_u32 s62, s62, {ABUF + 2048}')
        A(f'v_and_b32 {vr(t)}, 31, {vLane}', f'v_lshl_add_u32 {vr(RA + 17)}, {vr(t)}, 2, s62')
        A(f'v_and_b32 {vr(t)}, 7, {vLane}', 's_mul_i32 s62, s61, 5', f'v_add_u32 {vr(t + 1)}, s62, {vr(t)}', f'v_min_u32 {vr(t + 1)}, 11, {vr(t + 1)}')
        A(f'v_add_u32 {vr(t + 2)}, 4, {vr(t)}', f'v_cmp_lt_u32 vcc, 5, {vr(t)}', 's_cmp_eq_u32 s61, 0', 's_cselect_b64 vcc, vcc, 0', f'v_cndmask_b32 {vr(t + 1)}, {vr(t + 1)}, {vr(t + 2)}, vcc')
        A(f'v_lshrrev_b32 {vr(t)}, 3, {vLane}', f'v_mul_u32_u24 {vr(t)}, 12, {vr(t)}', f'v_add_u32 {vr(t)}, {vr(t)}, {vr(t + 1)}')
        A(f's_lshl_b32 s62, {sS}, 14', f's_add_u32 s62, s62, {FLAG2}', f'v_lshl_add_u32 {vr(RA + 21)}, {vr(t)}, 7, s62')
        A(f'v_bfe_u32 {vr(t)}, {vLane}, 3, 1', f'v_lshlrev_b32 {vr(t)}, 6, {vr(t)}', f'v_and_b32 {vr(t + 1)}, 7, {vLane}', f'v_lshl_add_u32 {vr(t)}, {vr(t + 1)}, 1, {vr(t)}')
        A(f's_lshl_b32 s60, {sW}, 4', f's_add_u32 s60, s60, {HH}', f'v_add_u32 {vr(RA + 18)}, s60, {vr(t)}')
        A(f'v_and_b32 {vr(t)}, 1, {vLane}', f'v_lshlrev_b32 {vr(t + 1)}, 6, {vr(t)}', f'v_lshl_add_u32 {vr(t + 1)}, {vr(g)}, 4, {vr(t + 1)}', f'v_add_u32 {vr(RA + 19)}, {HH}, {vr(t + 1)}')
        A(f'v_lshlrev_b32 {vr(t)}, 6, {vr(t)}', f'v_lshl_add_u32 {vr(t)}, {vr(g)}, 4, {vr(t)}')
        A(f's_mul_i32 s60, {sW}, {9 * 18432}', f's_lshl_b32 s61, {sGF}, 7', 's_add_u32 s60, s60, s61', f's_add_u32 s60, s60, {FBUF}', f'v_add_u32 {vr(RA + 20)}, s60, {vr(t)}')
        A(f's_mul_i32 s79, {sGF}, 36864')
        A(f'v_lshlrev_b32 {vr(t)}, 4, {vr(g)}', f'v_add_u32 {vr(t)}, {ONES}, {vr(t)}', f'v_cmp_gt_u32 vcc, 2, {vr(j)}', f'v_cndmask_b32 {vr(RA + 22)}, {vr(t)}, {vHNa}, vcc')
        A(f'v_bfe_u32 {vr(t)}, {vLane}, 3, 1', f'v_lshlrev_b32 {vr(t)}, 5, {vr(t)}', f'v_add_u32 {vr(RA + 23)}, {STAT}, {vr(t)}')
        A(f'v_lshrrev_b32 {vr(t + 1)}, 1, {vr(j)}', f'v_lshlrev_b32 {vr(t)}, 4, {vr(g)}', f'v_add_u32 {vr(t)}, {ZERO}, {vr(t)}')
        for tau in range(8):
            A(f'v_cmp_eq_u32 vcc, {tau}, {vr(t + 1)}', f'v_cndmask_b32 {vr(HA + 24 + tau)}, {vr(t)}, {vr(RA + 19)}, vcc')
        A(f'v_mul_u32_u24 {vr(t + 1)}, 18432, {vr(t + 1)}', f'v_add_u32 {vr(HA + 32)}, {vr(RA + 20)}, {vr(t + 1)}')
        A(f'v_lshlrev_b32 {vr(t)}, 2, {vr(j)}', f'v_add_u32 {vr(t)}, {ZERO}, {vr(t)}', f'v_mov_b32 {vr(t + 1)}, 0', f'ds_write_b32 {vr(t)}, {vr(t + 1)}')
        A(f'v_lshlrev_b32 {vr(t)}, 2, v0', f'v_add_u32 {vr(t)}, {ONES}, {vr(t)}', f'v_mov_b32 {vr(t + 1)}, 0x3f803f80', f'ds_write_b32 {vr(t)}, {vr(t + 1)}')
        A(f'v_min_u32 {vr(t + 2)}, 31, {vLane}', f'v_lshlrev_b32 {vr(t + 2)}, 2, {vr(t + 2)}', f'v_add_u32 {vr(t + 2)}, {ONES + 1024}, {vr(t + 2)}', f'ds_write_b32 {vr(t + 2)}, {vr(t + 1)}')
        A('s_mul_i32 s76, s59, 18432', f's_add_u32 s76, s76, {LW2}')
        A.label(le)

    def dma_t2(self, lo, hi, pace):
        A = self.A
        if 'o' in self.skip:
            return
        for grp in range(lo, hi):
            for i in range(3):
                A('s_mov_b32 m0, s78')
                A(f'buffer_load_dwordx4 {vr(RA + i)}, {WA_SRD}, s77 offen {self.wpol} lds')
                A('s_add_u32 s78, s78, 1024')
            A('s_add_u32 s77, s77, 36864')
            if pace:
                A(f's_waitcnt vmcnt({pace})')

    def dma_w13(self, lo, hi, pace):
        A = self.A
        if 'w' in self.skip:
            return
        for ks in range(lo, hi):
            A('s_mov_b32 m0, s78', 's_add_u32 s60, s78, 2048')
            A(f'buffer_load_dwordx4 {vr(HA)}, {WA_SRD}, s77 offen {self.wpol} lds')
            A('s_mov_b32 m0, s60', 's_add_u32 s78, s78, 4096')
            A(f'buffer_load_dwordx4 {vr(HA + 1)}, {W3_SRD}, s77 offen {self.wpol} lds')
            A(f's_add_u32 s77, s77, {32 * 9216}')
            if pace:
                A(f's_waitcnt vmcnt({pace})')

    def dma_w2(self, lo, hi, pace):
        A = self.A
        for i in range(lo, hi):
            A('s_mov_b32 m0, s76')
            A(f'buffer_load_dwordx4 {vr(HA + 2 + i)}, {W2_SRD}, s79 offen {self.wpol} lds')
            A('s_add_u32 s76, s76, 1024')
            if pace and i % 2:
                A(f's_waitcnt vmcnt({pace})')

    def helper(self):
        A = self.A
        A.label('L_help')
        self.setup_consts()
        self.setup_roles()
        lf, le = self.lab('hf'), self.lab('he')
        A(f's_cmp_eq_u32 {sRole}, 0', f's_cbranch_scc0 {lf}')
        self.dma_t2(self.bo, self.eo, self.pace)
        A(f's_branch {le}')
        A.label(lf)
        A(f's_cmp_eq_u32 {sRole}, 1', f's_cbranch_scc0 {le}')
        self.setup_w2()
        self.dma_w13(self.b13, self.e13, self.pace)
        self.dma_w2(0, self.e2, self.pace)
        A.label(le)
        chk, ok = self.lab('ev'), self.lab('evok')
        t = T0
        A('s_lshl_b32 s60, s59, 16', f's_add_u32 s60, s60, {QBUF + 4}', f'v_lshl_add_u32 {vr(t)}, {vLane}, 10, s60')
        A(f's_mov_b32 {sSpin}, {self.spin}')
        A.label(chk)
        A(f'buffer_load_dword {vr(t + 5)}, {vr(t)}, {WS_SRD}, 0 offen sc1', f'buffer_load_dword {vr(t + 7)}, {vr(t)}, {WS_SRD}, 0 offen offset:512 sc1', 's_waitcnt vmcnt(0)')
        A(f'v_xor_b32 {vr(t + 5)}, {sTag}, {vr(t + 5)}', f'v_xor_b32 {vr(t + 7)}, {sTag}, {vr(t + 7)}', f'v_or_b32 {vr(t + 5)}, {vr(t + 5)}, {vr(t + 7)}')
        A(f'v_cmp_ne_u32 vcc, 0, {vr(t + 5)}')
        self.spin_end(chk, ok)
        A.label(ok)
        self.stamp(3)
        if self.repf:
            A('s_barrier')
            self.prefill(again=True)
            A('s_waitcnt vmcnt(0)')
        if self.e1s == 2:
            lf1 = self.lab('f1')
            A(f's_lshl_b32 s60, {sG}, 4', f's_lshl_b32 s61, {sB}, 3', 's_add_u32 s60, s60, s61', f's_add_u32 s60, s60, {sS}', 's_lshl_b32 s60, s60, 7', f's_add_u32 s60, s60, {FLAG1}')
            A(f'v_mov_b32 {vr(t)}, {sTag}', f'v_mov_b32 {vr(t + 1)}, 0', 's_barrier', f's_cmp_eq_u32 {sW}, 2', f's_cbranch_scc0 {lf1}')
            if self.f1d:
                A(f's_sleep {self.f1d}')
            A('s_mov_b64 exec, 1', f'buffer_store_dword {vr(t)}, {vr(t + 1)}, {WS_SRD}, s60 offen sc1', 's_mov_b64 exec, -1')
            A.label(lf1)
        A('s_barrier')
        self.merge_stats(T0)
        A('s_lshl_b32 s60, s59, 5', 's_lshl_b64 exec, 1, s60')
        A(f'buffer_store_dwordx2 {vr(T0 + 10, 2)}, {vSad}, {WS_SRD}, 0 offen sc1')
        A('s_mov_b64 exec, -1', 's_barrier')
        self.stamp(4)
        for w in range(2):
            A(f'ds_read_b64 {vr(t + 2 * w, 2)}, {vCmbR} offset:{1024 * w}')
        A('s_waitcnt lgkmcnt(0)', f'v_pk_add_f32 {vr(t, 2)}, {vr(t, 2)}, {vr(t + 2, 2)}', f'v_cvt_pk_bf16_f32 {vr(t)}, {vr(t)}, {vr(t + 1)}')
        A(f'buffer_store_dword {vr(t)}, {vOad}, {WS_SRD}, 0 offen sc1')
        lf, le = self.lab('hf'), 'L_tail'
        A(f's_cmp_eq_u32 {sRole}, 0', f's_cbranch_scc0 {lf}')
        self.dma_t2(self.eo, 8, 0)
        A(f's_branch {le}')
        A.label(lf)
        A(f's_cmp_eq_u32 {sRole}, 1', f's_cbranch_scc0 {le}')
        self.dma_w13(self.e13, 18, 0)
        self.dma_w2(self.e2, 18, 0)
        A(f's_branch {le}')

    def merge_stats(self, t):
        A = self.A
        for w in range(2):
            A(f'ds_read_b64 {vr(t + 2 * w, 2)}, {vMstR} offset:{16 * w}')
        A('s_waitcnt lgkmcnt(0)')
        mx, ls = t + 10, t + 11
        A(f'v_max_f32 {vr(mx)}, {vr(t)}, {vr(t + 2)}')
        A(f'v_sub_f32 {vr(t)}, {vr(t)}, {vr(mx)}', f'v_sub_f32 {vr(t + 2)}, {vr(t + 2)}, {vr(mx)}')
        A(f'v_mul_f32 {vr(t)}, {sL2e}, {vr(t)}', f'v_mul_f32 {vr(t + 2)}, {sL2e}, {vr(t + 2)}')
        A(f'v_exp_f32 {vr(t)}, {vr(t)}', f'v_exp_f32 {vr(t + 2)}, {vr(t + 2)}')
        A(f'v_mul_f32 {vr(ls)}, {vr(t)}, {vr(t + 1)}', f'v_fmac_f32 {vr(ls)}, {vr(t + 2)}, {vr(t + 3)}')

    def tile_start(self, par):
        A, NS = self.A, self.NS
        ls, ln = self.lab('ts'), self.lab('tn')
        A(f's_cmp_lt_u32 {sIt}, {NS}', f's_cbranch_scc1 {ls}')
        A(f'v_readfirstlane_b32 s48, {vC}', f's_cmp_ge_u32 s48, {1024 - 16 * NS}', f's_cbranch_scc1 L_drain{par}')
        A('s_lshl_b32 s48, s48, 13', f's_add_u32 {sT}, {sPool}, s48', f's_branch {ln}')
        A.label(ls)
        A(f's_add_u32 {sT}, {sT}, 131072')
        A.label(ln)
        A(f's_add_u32 {sIt}, {sIt}, 1')

    def claim(self):
        A = self.A
        ln = self.lab('tn')
        A(f's_cmp_lt_u32 {sIt}, {self.NS}', f's_cbranch_scc1 {ln}')
        A(f'v_mov_b32 {vC}, 1', 's_mov_b64 exec, 1')
        A(f'buffer_atomic_add {vC}, {vCa}, {WS_SRD}, 0 offen sc0')
        A('s_mov_b64 exec, -1')
        A.label(ln)

    def stream(self):
        A, W, L = self.A, self.W, self.L
        qp = T0 + 48
        A(f's_cmp_eq_u32 {sH}, 0', 's_cbranch_scc0 L_help')
        A(f'ds_read_b128 {vr(qp, 4)}, {vQr}', 's_waitcnt lgkmcnt(0)')
        for k in range(4):
            A(f'v_cndmask_b32 {vr(BQ + k)}, {vr(qp + k)}, 0, {mPar}', f'v_cndmask_b32 {vr(BQ + 4 + k)}, 0, {vr(qp + k)}, {mPar}')
        A(f's_waitcnt vmcnt({self.cnt})')
        self.piece(7, track=False)
        for n in range(0, 8 - L):
            self.consume(n)
        A(f's_mov_b32 {sIt}, 2')
        A.label('L_loop')
        l2 = self.lab('it')
        A(f's_cmp_eq_u32 {sIt}, {self.late_pf}', f's_cbranch_scc0 {l2}')
        A(f'global_load_dword v255, {vPf}, {sPC}')
        A.label(l2)
        for n in range(8, 16):
            A(f's_waitcnt vmcnt({min(self.cnt, 8) if n % 4 == 0 else self.cnt})')
            if n % 4 == 0:
                self.tile_start((n // 4) & 1)
            if n % 4 == 2:
                self.claim()
            self.piece(n, track=False)
            self.consume(n - L)
        A('s_branch L_loop')
        for par in range(2):
            A.label(f'L_drain{par}')
            self.stamp(3)
            if self.e1s == 2:
                A('s_barrier')
            n0 = 8 + 4 * par
            for n in range(n0 - L, n0 - 2):
                if n > n0 - W:
                    A(f's_waitcnt vmcnt({4 * (n0 - 1 - n)})')
                self.consume(n)
            t = T0
            for c in ('quad_perm:[1,0,3,2]', 'quad_perm:[2,3,0,1]', 'row_ror:8'):
                A(f'v_add_f32_dpp {vL}, {vL}, {vL} ' + dpp(c))
            A(f'v_mov_b32 {vr(t)}, {vL}', f'v_permlane16_swap_b32 {vL}, {vr(t)}', f'v_add_f32 {vL}, {vL}, {vr(t)}')
            A(f'v_mov_b32 {vr(t)}, {vL}', f'v_permlane32_swap_b32 {vL}, {vr(t)}', f'v_add_f32 {vL}, {vL}, {vr(t)}')
            A('s_mov_b64 exec, 0x11', f'ds_write_b64 {vMstW}, v[18:19]', 's_mov_b64 exec, -1', 's_waitcnt lgkmcnt(0)', 's_barrier')
            self.merge_stats(t)
            A(f'v_rcp_f32 {vr(t + 8)}, {vr(t + 11)}', f's_cmp_eq_u32 {sW}, 0', 's_cselect_b64 vcc, -1, 0')
            A(f'v_cndmask_b32 {vr(t)}, {vr(t + 2)}, {vr(t)}, vcc', f'v_mul_f32 {vr(t + 8)}, {vr(t + 8)}, {vr(t)}')
            A('s_waitcnt vmcnt(4)')
            self.consume(n0 - 2)
            A('s_waitcnt vmcnt(0)')
            self.consume(n0 - 1)
            if par == 0:
                A('s_branch L_join')
        A.label('L_join')
        self.stamp(4)
        for r in range(4):
            A(f'v_mul_f32 {vr(ACC + r)}, {vr(ACC + r)}, {vr(T0 + 8)}')
        A(f'ds_write_b128 {vCmbW}, {vr(ACC, 4)}', 's_waitcnt lgkmcnt(0)', 's_barrier')

    def omega(self, st, mx, e):
        return [f'v_max_f32_dpp {vr(mx)}, {vr(st)}, {vr(st)} ' + dpp('quad_perm:[1,0,3,2]'),
                f'v_max_f32_dpp {vr(mx)}, {vr(mx)}, {vr(mx)} ' + dpp('quad_perm:[2,3,0,1]'),
                f'v_max_f32_dpp {vr(mx)}, {vr(mx)}, {vr(mx)} ' + dpp('row_half_mirror'),
                f'v_sub_f32 {vr(e)}, {vr(st)}, {vr(mx)}', f'v_mul_f32 {vr(e)}, {sL2e}, {vr(e)}', f'v_exp_f32 {vr(e)}, {vr(e)}',
                f'v_mul_f32 {vr(e)}, {vr(e)}, {vr(st + 1)}',
                f'v_add_f32_dpp {vr(mx)}, {vr(e)}, {vr(e)} ' + dpp('quad_perm:[1,0,3,2]'),
                f'v_add_f32_dpp {vr(mx)}, {vr(mx)}, {vr(mx)} ' + dpp('quad_perm:[2,3,0,1]'),
                f'v_add_f32_dpp {vr(mx)}, {vr(mx)}, {vr(mx)} ' + dpp('row_half_mirror'),
                f'v_rcp_f32 {vr(mx)}, {vr(mx)}', f'v_mul_f32 {vr(e)}, {vr(e)}, {vr(mx)}']

    def role_t2(self):
        A = self.A
        a, st = T0, T0 + 16

        def loads(stats=True):
            for ks in range(4):
                A(f'buffer_load_dwordx4 {vr(a + 4 * ks, 4)}, {vr(RA + 4)}, {WS_SRD}, 0 offen offset:{64 * ks} sc1')
            if stats:
                A(f'buffer_load_dwordx2 {vr(st, 2)}, {vr(RA + 5)}, {WS_SRD}, 0 offen sc1')
        xr = T0 + 60
        A(f'buffer_load_dwordx2 {vr(xr, 2)}, {vr(RA + 12)}, {X_SRD}, 0 offen')
        if self.e1s == 2:
            A(f'buffer_load_dword {vr(T0 + 76)}, {vr(RA + 19)}, {WS_SRD}, 0 offen sc1')
            A('s_waitcnt vmcnt(2)', 's_barrier')
        elif self.e1s:
            A(f'buffer_load_dwordx2 {vr(st, 2)}, {vr(RA + 5)}, {WS_SRD}, 0 offen sc1')
            if self.eo < 8:
                A('s_waitcnt vmcnt(2)', 's_barrier')
        else:
            loads()
            A('s_waitcnt vmcnt(6)', 's_barrier')
        for ks in range(4):
            for tau in range(3):
                for u in range(2):
                    A(f'ds_read_b64_tr_b16 {ar(128 + 4 * (3 * ks + tau) + 2 * u, 2)}, {vr(RA + 3)} offset:{ks * 3072 + u * 1536 + tau * 32}')
        def arrive():
            A(f'v_mov_b32 {vr(T0 + 38)}, {CTR}', f'v_mov_b32 {vr(T0 + 39)}, 1', 's_waitcnt lgkmcnt(0)', 's_mov_b64 exec, 1')
            A(f'ds_add_rtn_u32 {vr(T0 + 39)}, {vr(T0 + 38)}, {vr(T0 + 39)}', 's_mov_b64 exec, -1')

        def announce(then=None):
            lf = self.lab('f2')
            A('s_waitcnt lgkmcnt(0)', f'v_readfirstlane_b32 s60, {vr(T0 + 39)}', f'v_mov_b32 {vr(T0 + 38)}, {sTag}', 's_cmp_eq_u32 s60, 3', f's_cbranch_scc0 {lf}')
            A('s_mov_b64 exec, 0xff', f'buffer_store_dword {vr(T0 + 38)}, {vr(RA + 18)}, {WS_SRD}, 0 offen sc1', 's_mov_b64 exec, -1')
            if then:
                A(f's_mov_b32 {sSpin}, {self.spin}', 's_waitcnt vmcnt(1)', f's_branch {then}')
            A.label(lf)
        e1body = self.lab('e1b')
        if self.e1s == 2:
            ok = self.lab('e0ok')
            self.poll(lambda k: A(f'buffer_load_dword {vr(T0 + 76 + k)}, {vr(RA + 19)}, {WS_SRD}, 0 offen sc1'),
                      lambda k: A(f'v_cmp_ne_u32 vcc, {sTag}, {vr(T0 + 76 + k)}', f's_cbranch_vccz {ok}'), 1, ok, first_issued=True, sleep=self.ps[0])
            A.label(ok)
            if self.e1d:
                A(f's_sleep {self.e1d}')
            loads()
            if self.f2e:
                arrive()
                if self.f2d:
                    A(f's_sleep {self.f2d}')
                announce(e1body)
        elif self.e1s:
            ok = self.lab('e0ok')
            sr = lambda k: st if k == 0 else T0 + 76 + 2 * k

            def chk0(k):
                A(f'v_max_u32 {vr(T0 + 18)}, {vr(sr(k))}, {vr(sr(k) + 1)}', f'v_cmp_eq_u32 vcc, -1, {vr(T0 + 18)}')
                if k:
                    l = self.lab('e0')
                    A(f's_cbranch_vccnz {l}', f'v_mov_b32 {vr(T0 + 84)}, {vr(sr(k))}', f'v_mov_b32 {vr(T0 + 85)}, {vr(sr(k) + 1)}', f's_branch {ok}m')
                    A.label(l)
                else:
                    A(f's_cbranch_vccz {ok}0')
            self.poll(lambda k: A(f'buffer_load_dwordx2 {vr(sr(k), 2)}, {vr(RA + 5)}, {WS_SRD}, 0 offen sc1'), chk0, 1, ok + '0', first_issued=True, sleep=self.ps[0])
            A.label(ok + '0')
            A(f'v_mov_b32 {vr(T0 + 84)}, {vr(st)}', f'v_mov_b32 {vr(T0 + 85)}, {vr(st + 1)}')
            A.label(ok + 'm')
            st = T0 + 84
            for y in self.omega(st, T0 + 36, T0 + 37):
                A(y)
            st = T0 + 16
            if self.e1d:
                A(f's_sleep {self.e1d}')
            loads(False)
            if self.f2e:
                arrive()
                if self.f2d:
                    A(f's_sleep {self.f2d}')
                announce(e1body)
        chk, ok = self.lab('e1'), self.lab('e1ok')
        A(f's_mov_b32 {sSpin}, {self.spin}')
        A.label(chk)
        A('s_waitcnt vmcnt(0)')
        A.label(e1body)
        m = T0 + 18
        for k in range(6):
            last = a + 3 * k if (self.e1s == 1 and k == 5) else None
            A(f'v_max3_u32 {vr(m + k)}, {vr(a + 3 * k)}, {vr(last or a + 3 * k + 1)}, {vr(last or a + 3 * k + 2)}')
        A(f'v_max3_u32 {vr(m)}, {vr(m)}, {vr(m + 1)}, {vr(m + 2)}', f'v_max3_u32 {vr(m + 3)}, {vr(m + 3)}, {vr(m + 4)}, {vr(m + 5)}', f'v_max_u32 {vr(m)}, {vr(m)}, {vr(m + 3)}')
        A(f'v_cmp_eq_u32 vcc, -1, {vr(m)}')
        A(f's_cbranch_vccz {ok}', f's_sub_u32 {sSpin}, {sSpin}, 1', f's_cbranch_scc1 {ok}')
        if self.sl1:
            A(f's_sleep {self.sl1}')
        if self.mrt:
            A('s_mov_b64 exec, vcc')
        loads(self.e1s != 1)
        if self.mrt:
            A('s_mov_b64 exec, -1')
        A(f's_branch {chk}')
        A.label(ok)
        self.stamp(6)
        if self.cntdbg:
            A(f's_sub_u32 s81, {self.spin}, {sSpin}')
        if self.f2e:
            A('s_waitcnt lgkmcnt(0)')
        else:
            arrive()
        D = T0 + 24
        mf = []
        for ks in range(4):
            for tau in range(3):
                c = '0' if ks == 0 else vr(D + 4 * tau, 4)
                mf.append(f'v_mfma_f32_16x16x32_bf16 {vr(D + 4 * tau, 4)}, {vr(a + 4 * ks, 4)}, {ar(128 + 4 * (3 * ks + tau), 4)}, {c}')
        e = T0 + 37
        va = [''] * 12 if self.e1s == 1 else self.omega(st, T0 + 36, e)
        for k, (x, y) in enumerate(zip(mf, va)):
            A(x, y)
            if k == 4 and not self.f2e:
                announce()
        S = T0 + 40
        for r in range(4):
            for tau in range(3):
                op = 'v_mul_f32_dpp' if r == 0 else 'v_fmac_f32_dpp'
                A(f'{op} {vr(S + tau)}, {vr(e)}, {vr(D + 4 * tau + r)} ' + dpp(f'row_newbcast:{r}'))
        A(f'v_mov_b32 {vr(S + 3)}, {vr(S + 2)}', f'v_permlane16_swap_b32 {vr(S)}, {vr(S + 1)}', f'v_permlane16_swap_b32 {vr(S + 2)}, {vr(S + 3)}')
        A(f'v_add_f32 {vr(S)}, {vr(S)}, {vr(S + 1)}', f'v_add_f32 {vr(S + 2)}, {vr(S + 2)}, {vr(S + 3)}')
        A(f'ds_write_b32 {vr(RA + 6)}, {vr(S)}', f'ds_write_b32 {vr(RA + 7)}, {vr(S + 2)}', 's_waitcnt lgkmcnt(0)', 's_barrier')
        l1 = self.lab('ap')
        A(f's_cmp_eq_u32 {sH}, 0', f's_cbranch_scc0 {l1}')
        A(f'ds_read2_b32 {vr(S, 2)}, {vr(RA + 8)} offset0:0 offset1:96', f'ds_read_b32 {vr(S + 2)}, {vr(RA + 8)} offset:768', f'ds_read_b32 {vr(S + 3)}, {vr(RA + 8)} offset:1152')
        A('s_mov_b32 exec_hi, 0xffff', 's_waitcnt lgkmcnt(0)')
        A(f'v_add_f32 {vr(S)}, {vr(S)}, {vr(S + 1)}', f'v_add_f32 {vr(S + 2)}, {vr(S + 2)}, {vr(S + 3)}', f'v_add_f32 {vr(S)}, {vr(S)}, {vr(S + 2)}')
        A(f'buffer_store_dword {vr(S)}, {vr(RA + 9)}, {WS_SRD}, 0 offen sc1')
        A('s_mov_b64 exec, -1')
        A.label(l1)
        self.stamp(7)
        A(f's_cmp_lt_u32 {sN}, 9', 's_cbranch_scc0 L_fin')
        lw, lj = self.lab('fw'), self.lab('fj')
        q = T0 + 64
        for k in range(4):
            A(f'v_mov_b32 {vr(q + 8 + k)}, 0')
        A(f's_cmp_eq_u32 {sW}, 3', f's_cbranch_scc0 {lw}')
        ok = self.lab('f3ok')
        fa, ft = T0 + 44, T0 + 45
        fl = lambda k: T0 + 80 + 4 * k
        A(f's_lshl_b32 s60, {sS}, 15', f's_add_u32 s60, s60, {FLAG3}', f'v_lshl_add_u32 {vr(fa)}, {vLane}, 7, s60')
        for k in range(self.pd):
            A(f'v_mov_b32 {vr(fl(k) + 2)}, {sTag}')
        A('s_mov_b32 s60, 8192', 's_mov_b32 s61, 16384')

        def iss3(k):
            A(f'buffer_load_dword {vr(fl(k))}, {vr(fa)}, {WS_SRD}, 0 offen sc1', f'buffer_load_dword {vr(fl(k) + 1)}, {vr(fa)}, {WS_SRD}, s60 offen sc1')
            A('s_mov_b64 exec, 0xffff', f'buffer_load_dword {vr(fl(k) + 2)}, {vr(fa)}, {WS_SRD}, s61 offen sc1', 's_mov_b64 exec, -1')

        def chk3(k):
            A(f'v_xor_b32 {vr(ft)}, {sTag}, {vr(fl(k))}', f'v_xor_b32 {vr(ft + 1)}, {sTag}, {vr(fl(k) + 1)}', f'v_xor_b32 {vr(ft + 2)}, {sTag}, {vr(fl(k) + 2)}')
            A(f'v_or3_b32 {vr(ft)}, {vr(ft)}, {vr(ft + 1)}, {vr(ft + 2)}', f'v_cmp_ne_u32 vcc, 0, {vr(ft)}', f's_cbranch_vccz {ok}')
        self.poll(iss3, chk3, 3, ok, sleep=self.ps[2])
        A.label(ok)
        A(f's_branch {lj}')
        A.label(lw)
        A(f's_cmp_eq_u32 {sW}, 0', f's_cbranch_scc0 {lj}')
        p, hh = T0 + 44, T0 + 52
        chk, ok = self.lab('f2c'), self.lab('f2ok')
        A(f's_mov_b32 {sSpin}, {self.spin}')
        A.label(chk)
        A(f'buffer_load_dword {vr(p)}, {vr(RA + 13)}, {WS_SRD}, 0 offen sc1', 's_waitcnt vmcnt(0)', f'v_cmp_ne_u32 vcc, {sTag}, {vr(p)}')
        self.spin_end(chk, ok)
        A.label(ok)
        chk, ok = self.lab('e2'), self.lab('e2ok')
        A(f's_mov_b32 {sSpin}, {self.spin}')
        A.label(chk)
        A(f'buffer_load_dwordx4 {vr(p, 4)}, {vr(RA + 10)}, {WS_SRD}, 0 offen sc1', 's_waitcnt vmcnt(0)')
        for c in ('quad_perm:[1,0,3,2]', 'quad_perm:[2,3,0,1]', 'row_half_mirror'):
            for k in range(4):
                A(f'v_add_f32_dpp {vr(p + k)}, {vr(p + k)}, {vr(p + k)} ' + dpp(c))
        A(f'v_add_f32 {vr(p + 4)}, {vr(p)}, {vr(p + 1)}', f'v_add_f32 {vr(p + 5)}, {vr(p + 2)}, {vr(p + 3)}', f'v_cmp_u_f32 vcc, {vr(p + 4)}, {vr(p + 5)}')
        self.spin_end(chk, ok)
        A.label(ok)
        A(f'v_cvt_pk_bf16_f32 {vr(p)}, {vr(p)}, {vr(p + 1)}', f'v_cvt_pk_bf16_f32 {vr(p + 2)}, {vr(p + 2)}, {vr(p + 3)}')
        for k in range(2):
            A(f'v_lshlrev_b32 {vr(hh + 2 * k)}, 16, {vr(p + 2 * k)}', f'v_and_b32 {vr(hh + 2 * k + 1)}, 0xffff0000, {vr(p + 2 * k)}')
            A(f'v_lshlrev_b32 {vr(p + 4)}, 16, {vr(xr + k)}', f'v_and_b32 {vr(p + 5)}, 0xffff0000, {vr(xr + k)}')
            A(f'v_add_f32 {vr(hh + 2 * k)}, {vr(hh + 2 * k)}, {vr(p + 4)}', f'v_add_f32 {vr(hh + 2 * k + 1)}, {vr(hh + 2 * k + 1)}, {vr(p + 5)}')
            A(f'v_cvt_pk_bf16_f32 {vr(p + 4)}, {vr(hh + 2 * k)}, {vr(hh + 2 * k + 1)}')
            A(f'v_lshlrev_b32 {vr(hh + 2 * k)}, 16, {vr(p + 4)}', f'v_and_b32 {vr(hh + 2 * k + 1)}, 0xffff0000, {vr(p + 4)}')
        A(f'ds_write_b128 {vr(RA + 14)}, {vr(hh, 4)}', f'v_lshlrev_b32 {vr(p)}, 2, {vr(self.fields[3])}', f'v_add_u32 {vr(p)}, {HRES}, {vr(p)}')
        A('s_waitcnt lgkmcnt(0)', f'ds_read_b32 {vr(hh)}, {vr(p)}', 's_waitcnt lgkmcnt(0)')
        A.label(lj)
        A('s_mov_b32 s60, 2048', 's_mov_b32 s61, 4096', f's_mov_b32 {sSpin}, {self.spin}', 's_barrier')
        self.stamp(8)
        chk, ok = self.lab('e3'), self.lab('e3ok')
        A.label(chk)
        A(f'buffer_load_dwordx4 {vr(q, 4)}, {vr(RA + 11)}, {WS_SRD}, 0 offen sc1')
        A(f'buffer_load_dwordx4 {vr(q + 4, 4)}, {vr(RA + 11)}, {WS_SRD}, s60 offen sc1')
        A('s_mov_b64 exec, 0xffff')
        A(f'buffer_load_dwordx4 {vr(q + 8, 4)}, {vr(RA + 11)}, {WS_SRD}, s61 offen sc1')
        A('s_mov_b64 exec, -1', 's_waitcnt vmcnt(1)')
        A(f'v_pk_add_f32 {vr(q, 2)}, {vr(q, 2)}, {vr(q + 4, 2)}', f'v_pk_add_f32 {vr(q + 2, 2)}, {vr(q + 2, 2)}, {vr(q + 6, 2)}')
        A('s_waitcnt vmcnt(0)')
        A(f'v_pk_add_f32 {vr(q, 2)}, {vr(q, 2)}, {vr(q + 8, 2)}', f'v_pk_add_f32 {vr(q + 2, 2)}, {vr(q + 2, 2)}, {vr(q + 10, 2)}')
        A(f'v_pk_add_f32 {vr(q + 4, 2)}, {vr(q, 2)}, {vr(q + 2, 2)}', f'v_cmp_u_f32 vcc, {vr(q + 4)}, {vr(q + 5)}')
        self.spin_end(chk, ok)
        A.label(ok)
        self.stamp(9)
        for c in ('row_ror:4', 'row_ror:8'):
            for k in range(4):
                A(f'v_add_f32_dpp {vr(q + k)}, {vr(q + k)}, {vr(q + k)} ' + dpp(c))
        A('s_mov_b32 exec_lo, 0xf000f', 's_mov_b32 exec_hi, 0xf000f', f'ds_write_b128 {vr(RA + 15)}, {vr(q, 4)}', 's_mov_b64 exec, -1', 's_waitcnt lgkmcnt(0)', 's_barrier')
        A(f's_cmp_eq_u32 {sW}, 0', 's_cbranch_scc0 L_fin')
        A(f'ds_read2_b32 {vr(q, 2)}, {vr(RA + 16)} offset0:0 offset1:16', f'ds_read2_b32 {vr(q + 2, 2)}, {vr(RA + 16)} offset0:32 offset1:48', 's_waitcnt lgkmcnt(0)')
        A(f'v_pk_add_f32 {vr(q, 2)}, {vr(q, 2)}, {vr(q + 2, 2)}', f'v_add_f32 {vr(q)}, {vr(q)}, {vr(q + 1)}')
        A(f'v_mov_b32 {vr(q + 1)}, {vr(q)}', f'v_permlane16_swap_b32 {vr(q)}, {vr(q + 1)}', f'v_add_f32 {vr(q)}, {vr(q)}, {vr(q + 1)}')
        A(f'v_mov_b32 {vr(q + 1)}, {vr(q)}', f'v_permlane32_swap_b32 {vr(q)}, {vr(q + 1)}', f'v_add_f32 {vr(q)}, {vr(q)}, {vr(q + 1)}')
        A(f'v_cvt_pk_bf16_f32 {vr(q)}, {vr(q)}, {vr(q)}', f'v_lshlrev_b32 {vr(q)}, 16, {vr(q)}', f'v_add_f32 {vr(q)}, {vr(q)}, {vr(hh)}')
        A(f'v_mov_b32_dpp {vr(q + 1)}, {vr(q)} ' + dpp('quad_perm:[1,1,3,3]'), f'v_cvt_pk_bf16_f32 {vr(q)}, {vr(q)}, {vr(q + 1)}')
        A('s_mov_b64 exec, 0x5555', f'buffer_store_dword {vr(q)}, {vr(RA + 17)}, {OUT_SRD}, 0 offen {self.osc}', 's_mov_b64 exec, 1')
        A(f's_or_b32 s60, {sGF}, {sN}', f's_or_b32 s60, s60, {sW}', 's_cmp_eq_u32 s60, 0', 's_cbranch_scc0 L_fin')
        A(f'v_mov_b32 {vr(q + 2)}, {sTag}', f'v_mov_b32 {vr(q + 3)}, 0')
        A(f'buffer_store_dword {vr(q + 2)}, {vr(q + 3)}, {WS_SRD}, 0 offen sc1')
        A('s_branch L_fin')

    def flag3(self, when):
        A = self.A
        if self.f3 == when:
            l = self.lab('fl')
            A(f's_cmp_eq_u32 {sW}, 3', f's_cbranch_scc0 {l}', f's_lshl_b32 s60, {sGF}, 7', f's_add_u32 s60, s60, {FLAG3}')
            A(f'v_mov_b32 {vr(T0 + 94)}, {sTag}', f'v_lshlrev_b32 {vr(T0 + 95)}, 15, {vLane}', f's_mov_b64 exec, {(1 << self.rep3) - 1}')
            A(f'buffer_store_dword {vr(T0 + 94)}, {vr(T0 + 95)}, {WS_SRD}, s60 offen sc1', 's_mov_b64 exec, -1')
            A.label(l)
            if when == 2:
                A('s_nop 7')

    def role_ffn(self):
        A = self.A
        for G in range(1, 8):
            A(f's_mov_b32 s{55 + G}, {4608 * G}')
        p, e = T0, T0 + 32

        def gload(G):
            so = '0' if G == 0 else f's{55 + G}'
            A(f'buffer_load_dwordx4 {vr(p + 4 * G, 4)}, {vr(RA + 16)}, {WS_SRD}, {so} offen sc1', f'buffer_load_dword {vr(e + G)}, {vr(RA + 17)}, {WS_SRD}, {so} offen sc1')
        fl = T0 + 46
        A(f'buffer_load_dword {vr(fl)}, {vr(RA + 21)}, {WS_SRD}, 0 offen sc1')
        x = T0 + 80
        A(f'v_lshlrev_b32 {vr(x)}, 16, {vr(vXo)}', f'v_and_b32 {vr(x + 1)}, 0xffff0000, {vr(vXo)}')
        A(f'v_lshlrev_b32 {vr(x + 2)}, 16, {vr(vXo + 1)}', f'v_and_b32 {vr(x + 3)}, 0xffff0000, {vr(vXo + 1)}')
        A(f'v_lshlrev_b32 {vr(x + 4)}, 16, {vr(vXo + 2)}')
        def w13_reads(lo, hi):
            for ks in range(lo, hi):
                for u in range(2):
                    base = RA + 10 + (ks >= 9)
                    A(f'ds_read_b64_tr_b16 {ar(128 + 4 * ks + 2 * u, 2)}, {vr(base)} offset:{(ks % 9) * 4096 + u * 256}')
        w13_reads(0, self.e13)
        A('s_waitcnt vmcnt(1)', 's_barrier')
        self.stamp(6)
        w13_reads(self.e13, 18)
        if self.pk:
            for tau in range(9):
                for u in range(2):
                    A(f'ds_read_b64_tr_b16 {ar(200 + 4 * tau + 2 * u, 2)}, {vr(RA + 12 + tau % 4)} offset:{(tau // 4) * 128 + u * 4608}')
        allg, sweep, direct = self.lab('f2all'), self.lab('sweep'), self.lab('direct')
        A('s_mov_b32 s70, 0x01010101', 's_mov_b32 s71, 0x01010101')
        fr = lambda k: fl if k == 0 else T0 + 88 + k

        def chk2(k):
            again = self.lab('f2a')
            A(f'v_cmp_eq_u32 vcc, {sTag}, {vr(fr(k))}', 's_lshr_b64 s[92:93], vcc, 4', 's_and_b64 vcc, vcc, s[92:93]', 's_lshr_b64 s[92:93], vcc, 2', 's_and_b64 vcc, vcc, s[92:93]')
            A('s_lshr_b64 s[92:93], vcc, 1', 's_and_b64 vcc, vcc, s[92:93]', 's_and_b64 vcc, vcc, s[70:71]', f's_cbranch_scc0 {again}', 's_andn2_b64 s[70:71], s[70:71], vcc')
            for G in range(8):
                sk = self.lab('g')
                A(f's_bitcmp1_b64 vcc, {8 * G}', f's_cbranch_scc0 {sk}')
                gload(G)
                A.label(sk)
            A('s_cmp_eq_u64 s[70:71], 0', f's_cbranch_scc1 {allg}')
            A.label(again)
            if self.dir2:
                A('s_bcnt1_i32_b64 s63, s[70:71]', f's_cmp_le_u32 s63, {self.dir2}', f's_cbranch_scc1 {direct}')
        self.poll(lambda k: A(f'buffer_load_dword {vr(fr(k))}, {vr(RA + 21)}, {WS_SRD}, 0 offen sc1'), chk2, 1, allg, timeout=sweep, first_issued=True, sleep=self.ps[1])
        chk, ok = self.lab('e2'), self.lab('e2ok')
        if self.dir2:
            A.label(direct)
            A(f's_mov_b32 {sSpin}, {self.spin}')
            A.label(direct + 'r')
            if self.dsl:
                A(f's_sleep {self.dsl}')
            for G in range(8):
                sk = self.lab('g')
                A(f's_bitcmp1_b64 s[70:71], {8 * G}', f's_cbranch_scc0 {sk}')
                gload(G)
                A.label(sk)
            A(f's_branch {chk}')
        A.label(allg)
        A(f's_mov_b32 {sSpin}, {self.spin}')
        A.label(chk)
        h = T0 + 48
        A('s_waitcnt vmcnt(0)')
        for G in range(1, 8):
            src = p if G == 1 else h
            A(f'v_pk_add_f32 {vr(h, 2)}, {vr(src, 2)}, {vr(p + 4 * G, 2)}', f'v_pk_add_f32 {vr(h + 2, 2)}, {vr(src + 2, 2)}, {vr(p + 4 * G + 2, 2)}')
            if G % 2:
                A(f'v_pk_add_f32 {vr(e + 8, 2)}, {vr(e + G - 1, 2)}, ' + ('0' if G == 1 else vr(e + 8, 2)) if G == 1 else f'v_pk_add_f32 {vr(e + 8, 2)}, {vr(e + G - 1, 2)}, {vr(e + 8, 2)}')
        A(f'v_pk_add_f32 {vr(e + 10, 2)}, {vr(h, 2)}, {vr(h + 2, 2)}', f'v_add_f32 {vr(h + 4)}, {vr(e + 8)}, {vr(e + 9)}', f'v_add_f32 {vr(e + 10)}, {vr(e + 10)}, {vr(e + 11)}')
        A(f'v_cmp_u_f32 vcc, {vr(h + 4)}, {vr(e + 10)}')
        A(f's_cbranch_vccz {ok}', f's_sub_u32 {sSpin}, {sSpin}, 1', f's_cbranch_scc1 {ok}')
        if self.dir2:
            A(f's_and_b32 s63, {sSpin}, 15', 's_cmp_eq_u32 s63, 0', f's_cbranch_scc1 {sweep}', 's_cmp_eq_u64 s[70:71], 0', f's_cbranch_scc0 {direct}r')
        A.label(sweep)
        A(f's_and_b32 {sSpin}, {sSpin}, 0xffff')
        for G in range(8):
            gload(G)
        A(f's_branch {chk}')
        A.label(ok)
        self.stamp(7)
        self.flag3(4)
        A(f'v_cvt_pk_bf16_f32 {vr(h + 1)}, {vr(h)}, {vr(h + 1)}', f'v_cvt_pk_bf16_f32 {vr(h + 3)}, {vr(h + 2)}, {vr(h + 3)}')
        A(f'v_lshlrev_b32 {vr(h)}, 16, {vr(h + 1)}', f'v_and_b32 {vr(h + 1)}, 0xffff0000, {vr(h + 1)}', f'v_cvt_pk_bf16_f32 {vr(h + 4)}, {vr(h + 4)}, {vr(h + 4)}')
        A(f'v_lshlrev_b32 {vr(h + 2)}, 16, {vr(h + 3)}', f'v_and_b32 {vr(h + 3)}, 0xffff0000, {vr(h + 3)}', f'v_lshlrev_b32 {vr(h + 4)}, 16, {vr(h + 4)}')
        A(f'v_pk_add_f32 {vr(h, 2)}, {vr(h, 2)}, {vr(x, 2)}', f'v_pk_add_f32 {vr(h + 2, 2)}, {vr(h + 2, 2)}, {vr(x + 2, 2)}', f'v_add_f32 {vr(h + 4)}, {vr(h + 4)}, {vr(x + 4)}')
        A(f'v_cvt_pk_bf16_f32 {vr(h + 1)}, {vr(h)}, {vr(h + 1)}', f'v_cvt_pk_bf16_f32 {vr(h + 3)}, {vr(h + 2)}, {vr(h + 3)}', f'v_cvt_pk_bf16_f32 {vr(h + 4)}, {vr(h + 4)}, {vr(h + 4)}')
        tmp = T0 + 56
        if self.lnf:
            A(f'v_mov_b32 {vr(tmp + 10)}, {vr(h + 1)}', f'v_mov_b32 {vr(tmp + 11)}, {vr(h + 3)}')
            A(f'ds_write_b64 {vHNo}, {vr(tmp + 10, 2)}', f'ds_write_b16 {vHNe}, {vr(h + 4)}')
            self.flag3(5)
        A(f'v_lshlrev_b32 {vr(h)}, 16, {vr(h + 1)}', f'v_and_b32 {vr(h + 1)}, 0xffff0000, {vr(h + 1)}')
        A(f'v_lshlrev_b32 {vr(h + 2)}, 16, {vr(h + 3)}', f'v_and_b32 {vr(h + 3)}, 0xffff0000, {vr(h + 3)}', f'v_lshlrev_b32 {vr(h + 4)}, 16, {vr(h + 4)}')
        D = T0
        reads = [f'ds_read_b128 {ar(4 * ks, 4)}, {vr(RA + 22) if self.lnf else vHNa} offset:{64 * ks}' for ks in range(18)]
        for tau in range(0 if self.pk else 9):
            for u in range(2):
                reads.append(f'ds_read_b64_tr_b16 {ar(200 + 4 * tau + 2 * u, 2)}, {vr(RA + 12 + tau % 4)} offset:{(tau // 4) * 128 + u * 4608}')
        fill = []
        if self.lnf:
            self.ln_stage1(h, tmp)
            A('s_waitcnt lgkmcnt(0)', 's_barrier')
            a, b = tmp + 10, tmp + 14
            A(f'ds_read_b96 {vr(a, 3)}, {vr(RA + 23)}', f'ds_read_b96 {vr(b, 3)}, {vr(RA + 23)} offset:16')
            fill = self.ln_stage2(tmp)
        else:
            self.layernorm(h, tmp)
        if self.fst:
            self.stamp(1)
        self.flag3(1)
        issued = 0
        for _ in range(13):
            A(reads[issued]); issued += 1
        for ks in range(18):
            A(f's_waitcnt lgkmcnt({issued - ks - 1})')
            A(f'v_mfma_f32_16x16x32_bf16 {vr(D, 4)}, {ar(4 * ks, 4)}, {ar(128 + 4 * ks, 4)}, ' + ('0' if ks == 0 else vr(D, 4)))
            while issued < len(reads) and issued - (ks + 1) < 15:
                A(reads[issued]); issued += 1
            for _ in range(2):
                if fill:
                    A(fill.pop(0))
        while issued < len(reads):
            A(reads[issued]); issued += 1
        for y in fill:
            A(y)
        if self.fst:
            A('s_nop 7', f'v_mov_b32 {vr(T0 + 4)}, {vr(D)}')
            self.stamp(2)
        self.flag3(2)
        gt, up = T0 + 4, T0 + 5
        A(f'v_mov_b32 {vr(gt)}, {vr(D)}', f'v_mov_b32 {vr(up)}, {vr(D + 1)}')
        A(f'v_mov_b32_dpp {vr(gt)}, {vr(D + 1)} ' + dpp('row_shr:8', bank=0xc), f'v_mov_b32_dpp {vr(up)}, {vr(D)} ' + dpp('row_shl:8', bank=0x3))
        if self.lnf:
            mu, ri = tmp + 6, tmp + 7
            cg, cu = T0 + 6, T0 + 7
            A(f'v_mov_b32 {vr(cg)}, {vr(D + 2)}', f'v_mov_b32 {vr(cu)}, {vr(D + 2)}')
            A(f'v_mov_b32_dpp {vr(cg)}, {vr(D + 2)} ' + dpp('row_shr:8', bank=0xc), f'v_mov_b32_dpp {vr(cu)}, {vr(D + 2)} ' + dpp('row_shl:8', bank=0x3))
            A(f'v_fma_f32 {vr(gt)}, -{vr(mu)}, {vr(cg)}, {vr(gt)}', f'v_fma_f32 {vr(up)}, -{vr(mu)}, {vr(cu)}, {vr(up)}')
            A(f'v_mul_f32 {vr(gt)}, {vr(gt)}, {vr(ri)}', f'v_mul_f32 {vr(up)}, {vr(up)}, {vr(ri)}')
        A(f'v_cvt_pk_bf16_f32 {vr(up)}, {vr(gt)}, {vr(up)}', f'v_lshlrev_b32 {vr(gt)}, 16, {vr(up)}', f'v_and_b32 {vr(up)}, 0xffff0000, {vr(up)}')
        e = T0 + 6
        A(f'v_mul_f32 {vr(e)}, {sL2e}, {vr(gt)}', f'v_exp_f32 {vr(e)}, -{vr(e)}', f'v_add_f32 {vr(e)}, 1.0, {vr(e)}', f'v_rcp_f32 {vr(e)}, {vr(e)}')
        A(f'v_mul_f32 {vr(e)}, {vr(gt)}, {vr(e)}', f'v_cvt_pk_bf16_f32 {vr(e)}, {vr(e)}, {vr(e)}', f'v_lshlrev_b32 {vr(e)}, 16, {vr(e)}')
        A(f'v_mul_f32 {vr(e)}, {vr(e)}, {vr(up)}', f'v_cvt_pk_bf16_f32 {vr(e)}, {vr(e)}, {vr(e)}')
        if self.fst:
            self.stamp(3)
        A('s_mov_b64 exec, 0xffff', f'ds_write_b16 {vr(RA + 18)}, {vr(e)}', 's_mov_b64 exec, -1', 's_waitcnt lgkmcnt(0)', 's_barrier')
        self.stamp(8)
        self.flag3(3)
        B = T0 + 8
        if self.pk:
            D2 = T0 + 48
            for tau in range(9):
                A(f'ds_read_b128 {vr(B + 4 * tau, 4)}, {vr(HA + 24 + tau % 8)}')
            order = [0, 1, 2, 3, 4, 5, 6, 7, 8]
            for tau in order:
                A(f's_waitcnt lgkmcnt({8 - tau})')
                d = D2 + 4 if tau == 8 else D2
                A(f'v_mfma_f32_16x16x32_bf16 {vr(d, 4)}, {ar(200 + 4 * tau, 4)}, {vr(B + 4 * tau, 4)}, ' + ('0' if tau in (0, 8) else vr(d, 4)))
            A(f's_mov_b32 s60, {18432 * 8}', 's_nop 5')
            A(f'buffer_store_dwordx4 {vr(D2, 4)}, {vr(HA + 32)}, {WS_SRD}, 0 offen sc1')
            A('s_mov_b32 exec_lo, 0x30003', 's_mov_b32 exec_hi, 0x30003')
            A(f'buffer_store_dwordx4 {vr(D2 + 4, 4)}, {vr(RA + 20)}, {WS_SRD}, s60 offen sc1')
        else:
            A(f'ds_read_b128 {vr(B, 4)}, {vr(RA + 19)}', 's_waitcnt lgkmcnt(0)')
            D2 = T0 + 12
            for tau in range(9):
                A(f'v_mfma_f32_16x16x32_bf16 {vr(D2 + 4 * tau, 4)}, {ar(200 + 4 * tau, 4)}, {vr(B, 4)}, 0')
            A('s_mov_b32 exec_lo, 0x30003', 's_mov_b32 exec_hi, 0x30003')
            for tau in range(9):
                A(f's_mov_b32 s60, {18432 * tau}', f'buffer_store_dwordx4 {vr(D2 + 4 * tau, 4)}, {vr(RA + 20)}, {WS_SRD}, s60 offen sc1')
        self.stamp(9)

    def fin(self):
        A = self.A
        A.label('L_fin')
        if self.diag:
            A('s_mov_b64 exec, 1', 's_getreg_b32 s60, hwreg(HW_REG_XCC_ID)', 's_and_b32 s60, s60, 15', f's_lshl_b32 s61, {sRole}, 4', 's_or_b32 s60, s60, s61')
            A('s_lshl_b32 s61, s2, 2', f's_add_u32 s61, s61, {sW}', 's_lshl_b32 s61, s61, 6', f's_add_u32 s61, s61, {STAMPS}', 'v_mov_b32 v1, s61')
            A('s_waitcnt vmcnt(0)', 's_memrealtime s[100:101]', 's_waitcnt lgkmcnt(0)', 's_mov_b32 s90, s100')
            for k in range(11):
                A(f'v_mov_b32 v2, s{80 + k}', f'global_store_dword v1, v2, s[12:13] offset:{4 * k}')
            A('v_mov_b32 v2, s60', 'global_store_dword v1, v2, s[12:13] offset:60')
            if self.diag > 1:
                A(f's_or_b32 s61, s2, {sW}', 's_cmp_eq_u32 s61, 0', 's_cbranch_scc0 L_end')
                if self.pad:
                    A.label('L_pad')
                    A('s_memrealtime s[62:63]', 's_waitcnt lgkmcnt(0)', 's_sub_u32 s62, s62, s80', f's_cmp_lt_u32 s62, {self.pad * 100}', 's_cbranch_scc1 L_pad')
                A('s_load_dwordx2 s[62:63], s[0:1], 80', 'v_mov_b32 v1, 0', 's_waitcnt lgkmcnt(0)')
                for k in range(11):
                    A(f's_sub_u32 s61, s{80 + k}, s80', 'v_mov_b32 v2, s61', f'global_store_dword v1, v2, s[62:63] offset:{4 * k}')
        A.label('L_end')
        A('s_endpgm')

    def build(self):
        A = self.A
        if self.diag:
            for k in range(80, 91):
                A(f's_mov_b32 s{k}, 0')
        self.head()
        self.stream()
        A.label('L_tail')
        self.stamp(5)
        A(f's_cmp_eq_u32 {sRole}, 1', 's_cbranch_scc1 L_ffn', f's_cmp_eq_u32 {sRole}, 0', 's_cbranch_scc0 L_fin')
        self.role_t2()
        A.label('L_ffn')
        self.role_ffn()
        self.fin()
        self.helper()
        self.slow_paths()
        A.label('L_codeend')
        return A.finish()


HEADER = open(os.path.join(os.path.dirname(os.path.abspath(__file__)), 'header.txt')).read()


def make(**kw):
    g = Gen(**kw)
    body = g.build()
    return f"""{HEADER}; @launch grid=(256,1,1) block=(256,1,1) lds={LDS_BYTES}
.amdgcn_target "amdgcn-amd-amdhsa--gfx950"
.text
.globl {KNAME}
.p2align 8
.type {KNAME},@function
{KNAME}:
{body}
.section .rodata,"a"
.p2align 6
.amdhsa_kernel {KNAME}
  .amdhsa_next_free_vgpr 512
  .amdhsa_next_free_sgpr 102
  .amdhsa_accum_offset 256
  .amdhsa_group_segment_fixed_size 0
  .amdhsa_kernarg_size 96
  .amdhsa_user_sgpr_count 2
  .amdhsa_user_sgpr_kernarg_segment_ptr 1
  .amdhsa_system_sgpr_workgroup_id_x 1
  .amdhsa_float_denorm_mode_32 3
.end_amdhsa_kernel
"""


if __name__ == '__main__':
    out = sys.argv[1]
    kw = {}
    for a in sys.argv[2:]:
        k, v = a.split('=')
        kw[k] = int(v) if v.lstrip('-').isdigit() else v.replace('+', ' ')
    text = make(**kw)
    open(out, 'w').write(text)
```

```python
import sys, os, struct
sys.path.insert(0, os.path.dirname(os.path.abspath(__file__)))
from emit import Asm

KNAME = "sequential_preLN__gqa_block_cached__glu_gated_swiglu__decode_kernel"

FLAG1, FLAG2, FLAG3 = 16384, 1536 << 10, 1792 << 10
EPOCH, CNT, OBUF, SBUF, ABUF, FBUF, QBUF = 0, 4096, 65536, 1408 << 10, 204800, 262144, 1 << 20
WS_BYTES = 2 << 20
STAMPS = 16 << 20
LW = 0
LW2 = 73728
SCR = 110592
CTR, HRES, FIN, ONES = SCR + 8704, SCR + 8768, SCR + 8832, SCR + 10048
HN, STAT, QL, MST, HH, RED, CMB = SCR, SCR + 2304, SCR + 2368, SCR + 2880, SCR + 2944, SCR + 3072, SCR + 4608
ZERO = SCR + 11264
LDS_BYTES = SCR + 11264 + 64

def f2u(x):
    return struct.unpack('<I', struct.pack('<f', x))[0]

sW = 's3'
K_SRD, V_SRD, WS_SRD, X_SRD, WA_SRD, W2_SRD, OUT_SRD = 's[4:7]', 's[8:11]', 's[12:15]', 's[16:19]', 's[20:23]', 's[24:27]', 's[28:31]'
sT, sIt, sTag, sRole, sGF, sN, sScale, sL2e = 's32', 's33', 's34', 's35', 's36', 's37', 's38', 's39'
mQ1, mQ2, mQ3 = 's[40:41]', 's[42:43]', 's[44:45]'
sPC = 's[46:47]'
mHi, mPar = 's[72:73]', 's[74:75]'
sSpin = 's50'
sPool, sB, sG, sS = 's51', 's52', 's53', 's54'
W3_SRD = 's[64:67]'
sH = 's68'
sT2 = 's69'
mA, mB, mC = 's[60:61]', 's[62:63]', 's[70:71]'
vNI = 'v96'
vLane = 'v1'
vK0, vK1, vV0, vV1 = 'v2', 'v3', 'v4', 'v5'
SEL = 6
BQ = 10
vM, vL = 'v18', 'v19'
ACC = 20
DQ = 24
SS = 40
PA = 48
vXo = 80
vEv = 'v84'
vOad, vSad = 'v85', 'v86'
vHNo, vHNe, vStW, vStR, vHNa = 'v87', 'v88', 'v89', 'v90', 'v91'
vCmbW, vCmbR, vMstW, vMstR, vMstO = 'v92', 'v93', 'v94', 'v95', 'v96'
vPf = 'v97'
vC, vCa = 'v98', 'v99'
vQw, vQg, vQr = 'v83', 'v47', 'v46'
HA = 200
RA = 100
T0 = 128


def vr(a, n=1):
    return f'v{a}' if n == 1 else f'v[{a}:{a + n - 1}]'


def ar(a, n=1):
    return f'a{a}' if n == 1 else f'a[{a}:{a + n - 1}]'


def dpp(ctrl, row=0xf, bank=0xf, bc=False):
    return f'{ctrl} row_mask:{row:#x} bank_mask:{bank:#x}' + (' bound_ctrl:0' if bc else '')


class VM:
    def __init__(self, A):
        self.A, self.q = A, []

    def op(self, text, tag=None):
        self.A(text)
        self.q.append(tag)

    def wait(self, tag):
        last = max(i for i, t in enumerate(self.q) if t == tag)
        n = len(self.q) - 1 - last
        assert n <= 63
        self.A(f's_waitcnt vmcnt({n})')
        self.q = self.q[last + 1:]


class Gen:
    def __init__(self, W=3, L=7, diag=0, spin=65536, pol='nt', wpol='nt', pad=0, NS=58, npre=1, e13=18, e2=0, eo=8, late_pf=48, pace=2, smask=0x7ff, a13=0, b13=2, ao=0, bo=2, sleep=0, sl3=0, sl2=0, sl1=0, repf=0, f3=1, f2=1, e1s=1, rep3=8, sstr=128, cnt=None, skip='', lnf=1, e1d=0, cntdbg=0, fst=0, pd=1, pst=2, pk=1, ps1=0, ps2=0, ps3=0, f2e=0, f1d=0, f2d=0, dir2=0, osc='', dsl=0, mrt=1, kfirst=1, NH=0, lst=0, nocomp=0, deep=1, ipa=1, ipb=1, ipc=1, hcnt=6, stage=1, spos=0, hset=1):
        self.hset = hset
        self.stage, self.spos = stage, spos
        self.deep, self.ipa, self.ipb, self.ipc, self.hcnt = deep, ipa, ipb, ipc, hcnt
        self.nissued = 0
        self.lst, self.nocomp = lst, nocomp
        self.NH = NH
        self.mrt, self.kfirst = mrt, kfirst
        self.dir2, self.osc, self.dsl = dir2, osc, dsl
        self.f2d = f2d
        self.f2e, self.f1d = f2e, f1d
        self.ps = (ps1, ps2, ps3)
        self.pd, self.pst, self.pk = pd, pst, pk
        self.fst = fst
        self.lnf, self.e1d, self.cntdbg = lnf, e1d, cntdbg
        self.cnt = 4 * (W - 1) if cnt is None else cnt
        W = (self.cnt + 3) // 4 + 1
        self.skip = skip
        self.rep3, self.sstr = rep3, sstr
        self.f3, self.f2, self.e1s = f3, f2, e1s
        self.repf = repf
        self.sl3, self.sl2, self.sl1 = sl3, sl2, sl1
        self.smask, self.a13, self.b13, self.ao, self.bo, self.sleep = smask, a13, b13, ao, bo, sleep
        self.pace = pace
        assert W <= 4 and late_pf % 2 == 0 and a13 <= b13 <= e13 and ao <= bo <= eo
        self.pad, self.NS, self.npre, self.e13, self.e2, self.eo = pad, NS, npre, e13, e2, eo
        self.W, self.L, self.diag, self.spin, self.pol, self.wpol = W, L, diag, spin, pol, wpol
        self.late_pf = late_pf
        self.A = Asm()
        self.vm = VM(self.A)
        self.slow = []
        self.nlab = 0

    def lab(self, base):
        self.nlab += 1
        return f'L_{base}{self.nlab}'

    def stamp(self, k):
        if self.diag and (self.smask >> k) & 1:
            self.A('s_memrealtime s[100:101]', 's_waitcnt lgkmcnt(0)', f's_mov_b32 s{80 + k}, s100')

    def piece(self, n, track=True):
        kind, slot = n & 3, (n if n < 16 and self.deep else n & 7)
        srd = K_SRD if kind < 2 else V_SRD
        va = (vK0, vK1, vV0, vV1)[kind]
        for t in range(4):
            so = sT2 if (self.NH and kind % 2 and n >= 24) else sT
            txt = f'buffer_load_dwordx4 {ar(slot * 16 + 4 * t, 4)}, {va}, {srd}, {so} offen offset:{t * 1024} {self.pol}'
            if track:
                self.vm.op(txt, ('P', n))
            else:
                self.A(txt)

    def consume(self, n, mask=mC):
        A = self.A
        kind, slot = n & 3, (n if n < 16 and self.deep else n & 7)
        if kind < 2:
            for t in range(4):
                d = DQ + 4 * (2 * kind + t // 2)
                c = '0' if t % 2 == 0 else vr(d, 4)
                A(f'v_mfma_f32_16x16x32_bf16 {vr(d, 4)}, {ar(slot * 16 + 4 * t, 4)}, {vr(BQ + 4 * (t & 1), 4)}, {c}')
            if kind == 1:
                self.softmax(mask)
        else:
            for t in range(4):
                tt = 4 * (kind - 2) + t
                A(f'v_mfma_f32_16x16x32_bf16 {vr(ACC, 4)}, {vr(PA + 4 * tt, 4)}, {ar(slot * 16 + 4 * t, 4)}, {vr(ACC, 4)}')

    def softmax(self, mask):
        A = self.A
        for m in range(4):
            A(f'v_mov_b32_dpp {vr(SS + m)}, {vr(DQ + 4 * m)} ' + dpp('quad_perm:[0,0,0,0]'))
            for b in range(1, 4):
                A(f'v_add_f32_dpp {vr(SS + m)}, {vr(DQ + 4 * m + b)}, {vr(SS + m)} ' + dpp(f'quad_perm:[{b},{b},{b},{b}]'))
        R, P, Tm = 'v44', 'v45', 'v46'
        A(f'v_cndmask_b32 {R}, {vr(SS)}, {vr(SS + 1)}, {mQ1}')
        A(f'v_cndmask_b32 {R}, {R}, {vr(SS + 2)}, {mQ2}')
        A(f'v_cndmask_b32 {R}, {R}, {vr(SS + 3)}, {mQ3}')
        A(f'v_cvt_pk_bf16_f32 {R}, {R}, {R}')
        A(f'v_lshlrev_b32 {R}, 16, {R}')
        A(f'v_mul_f32 {R}, {sScale}, {R}')
        A(f'v_cvt_pk_bf16_f32 {R}, {R}, {R}')
        A(f'v_lshlrev_b32 {R}, 16, {R}')
        if self.NH:
            A(f'v_cndmask_b32 {R}, {R}, {vNI}, {mask}')
        slow, back = self.lab('slow'), self.lab('back')
        A(f'v_cmp_gt_f32 vcc, {R}, {vM}')
        A(f's_cbranch_vccnz {slow}')
        A.label(back)
        self.slow.append((slow, back))
        A(f'v_sub_f32 {P}, {R}, {vM}')
        A(f'v_mul_f32 {P}, {sL2e}, {P}')
        A(f'v_exp_f32 {P}, {P}')
        A(f'v_add_f32 {vL}, {vL}, {P}')
        A(f'v_mov_b32_dpp {Tm}, {P} ' + dpp('row_shl:4', bc=True))
        A(f'v_cvt_pk_bf16_f32 {P}, {P}, {Tm}')
        for t in range(8):
            A(f'v_mov_b32_dpp {vr(SS + (t & 3))}, {P} ' + dpp(f'row_newbcast:{8 * (t & 1) + (t >> 1)}'))
            if t % 4 == 3:
                for tt in range(t - 3, t + 1):
                    for d in range(4):
                        b = vr(SS + (tt & 3))
                        A(f'v_perm_b32 {vr(PA + 4 * tt + d)}, {b}, {b}, {vr(SEL + d)}')

    def slow_paths(self):
        A = self.A
        R, t, t2, f = 'v44', 'v45', 'v46', 'v47'
        for slow, back in self.slow:
            A.label(slow)
            A(f'v_max_f32_dpp {t}, {R}, {R} ' + dpp('quad_perm:[1,0,3,2]'))
            A(f'v_max_f32_dpp {t}, {t}, {t} ' + dpp('quad_perm:[2,3,0,1]'))
            A(f'v_max_f32_dpp {t}, {t}, {t} ' + dpp('row_ror:8'))
            A(f'v_mov_b32 {t2}, {t}', f'v_permlane16_swap_b32 {t}, {t2}', f'v_max_f32 {t}, {t}, {t2}')
            A(f'v_mov_b32 {t2}, {t}', f'v_permlane32_swap_b32 {t}, {t2}', f'v_max3_f32 {t}, {t}, {t2}, {vM}')
            A(f'v_sub_f32 {f}, {vM}, {t}', f'v_mul_f32 {f}, {sL2e}, {f}', f'v_exp_f32 {f}, {f}')
            A(f'v_mov_b32 {vM}, {t}', f'v_mul_f32 {vL}, {vL}, {f}')
            A(f'v_readlane_b32 s48, {f}, 0', f'v_readlane_b32 s49, {f}, 4')
            A(f'v_mov_b32 {t}, s48', f'v_mov_b32 {t2}, s49', f'v_cndmask_b32 {t}, {t}, {t2}, {mHi}')
            for r in range(4):
                A(f'v_mul_f32 {vr(ACC + r)}, {vr(ACC + r)}, {t}')
            A('s_nop 1', f's_branch {back}')

    def ln_stage1(self, h, tmp):
        A = self.A
        d, s1, s2, hx = tmp, tmp + 6, tmp + 7, tmp + 5
        A(f'v_readfirstlane_b32 s48, {vr(h)}')
        for k in range(5):
            A(f'v_subrev_f32 {vr(d + k)}, s48, {vr(h + k)}')
        A(f'v_mul_f32 {vr(hx)}, 0.5, {vr(d + 4)}')
        A(f'v_add_f32 {vr(s1)}, {vr(d)}, {vr(d + 1)}', f'v_mul_f32 {vr(s2)}, {vr(d)}, {vr(d)}')
        A(f'v_add_f32 {vr(s1)}, {vr(s1)}, {vr(d + 2)}', f'v_fmac_f32 {vr(s2)}, {vr(d + 1)}, {vr(d + 1)}')
        A(f'v_add_f32 {vr(s1)}, {vr(s1)}, {vr(d + 3)}', f'v_fmac_f32 {vr(s2)}, {vr(d + 2)}, {vr(d + 2)}')
        A(f'v_add_f32 {vr(s1)}, {vr(s1)}, {vr(hx)}', f'v_fmac_f32 {vr(s2)}, {vr(d + 3)}, {vr(d + 3)}')
        A(f'v_mov_b32 {vr(tmp + 8)}, s48', f'v_fmac_f32 {vr(s2)}, {vr(hx)}, {vr(d + 4)}')
        for c, row in (('quad_perm:[1,0,3,2]', 0xf), ('quad_perm:[2,3,0,1]', 0xf), ('row_half_mirror', 0xf), ('row_mirror', 0xf),
                       ('row_bcast:15', 0xa), ('row_bcast:31', 0xc)):
            for s in (s1, s2):
                A(f'v_add_f32_dpp {vr(s)}, {vr(s)}, {vr(s)} ' + dpp(c, row=row))
        A('s_mov_b32 exec_lo, 0', 's_mov_b32 exec_hi, 0x80000000')
        A(f'ds_write_b96 {vStW}, {vr(s1, 3)}')
        A('s_mov_b64 exec, -1')

    def ln_stage2(self, tmp):
        a, b, ta, tb, mu, den = tmp + 10, tmp + 14, tmp, tmp + 1, tmp + 6, tmp + 7
        return [f'v_mul_f32 {vr(ta)}, {f2u(1 / 288):#x}, {vr(a)}', f'v_mul_f32 {vr(tb)}, {f2u(1 / 288):#x}, {vr(b)}',
                f'v_fma_f32 {vr(a + 1)}, -{vr(ta)}, {vr(a)}, {vr(a + 1)}', f'v_fma_f32 {vr(b + 1)}, -{vr(tb)}, {vr(b)}, {vr(b + 1)}',
                f'v_add_f32 {vr(ta)}, {vr(ta)}, {vr(a + 2)}', f'v_add_f32 {vr(tb)}, {vr(tb)}, {vr(b + 2)}',
                f'v_add_f32 {vr(a + 1)}, {vr(a + 1)}, {vr(b + 1)}', f'v_sub_f32 {vr(a)}, {vr(ta)}, {vr(tb)}',
                f'v_add_f32 {vr(ta)}, {vr(ta)}, {vr(tb)}', f'v_mul_f32 {vr(b)}, {f2u(144.0):#x}, {vr(a)}',
                f'v_mul_f32 {vr(ta)}, 0.5, {vr(ta)}', f'v_fmac_f32 {vr(a + 1)}, {vr(b)}, {vr(a)}',
                f'v_mul_f32 {vr(a + 1)}, {f2u(1 / 576):#x}, {vr(a + 1)}', f'v_max_f32 {vr(a + 1)}, 0, {vr(a + 1)}',
                f'v_cvt_pk_bf16_f32 {vr(ta)}, {vr(ta)}, {vr(a + 1)}',
                f'v_and_b32 {vr(den)}, 0xffff0000, {vr(ta)}', f'v_lshlrev_b32 {vr(mu)}, 16, {vr(ta)}',
                f'v_add_f32 {vr(den)}, {f2u(1e-5):#x}, {vr(den)}', f'v_cvt_pk_bf16_f32 {vr(den)}, {vr(den)}, {vr(den)}',
                f'v_lshlrev_b32 {vr(den)}, 16, {vr(den)}', f'v_sqrt_f32 {vr(den)}, {vr(den)}',
                f'v_cvt_pk_bf16_f32 {vr(den)}, {vr(den)}, {vr(den)}', f'v_lshlrev_b32 {vr(den)}, 16, {vr(den)}', f'v_rcp_f32 {vr(den)}, {vr(den)}']

    def layernorm(self, h, tmp, mid=None, pre=None):
        A = self.A
        d = tmp
        self.ln_stage1(h, tmp)
        if pre:
            pre()
        A('s_waitcnt lgkmcnt(0)', 's_barrier')
        a, b = tmp + 10, tmp + 14
        A(f'ds_read_b96 {vr(a, 3)}, {vStR}', f'ds_read_b96 {vr(b, 3)}, {vStR} offset:16')
        if mid:
            mid()
        A(f's_mov_b32 s48, {f2u(1 / 288):#x}', f's_mov_b32 s49, {f2u(144.0):#x}', f's_waitcnt lgkmcnt({10 if mid else 0})')
        ta, tb = tmp, tmp + 1
        A(f'v_mul_f32 {vr(ta)}, s48, {vr(a)}', f'v_mul_f32 {vr(tb)}, s48, {vr(b)}')
        A(f'v_fma_f32 {vr(a + 1)}, -{vr(ta)}, {vr(a)}, {vr(a + 1)}', f'v_fma_f32 {vr(b + 1)}, -{vr(tb)}, {vr(b)}, {vr(b + 1)}')
        A(f'v_add_f32 {vr(ta)}, {vr(ta)}, {vr(a + 2)}', f'v_add_f32 {vr(tb)}, {vr(tb)}, {vr(b + 2)}')
        A(f'v_add_f32 {vr(a + 1)}, {vr(a + 1)}, {vr(b + 1)}', f'v_sub_f32 {vr(a)}, {vr(ta)}, {vr(tb)}')
        A(f'v_add_f32 {vr(ta)}, {vr(ta)}, {vr(tb)}', f'v_mul_f32 {vr(b)}, s49, {vr(a)}')
        A(f'v_mul_f32 {vr(ta)}, 0.5, {vr(ta)}', f'v_fmac_f32 {vr(a + 1)}, {vr(b)}, {vr(a)}')
        A(f's_mov_b32 s48, {f2u(1 / 576):#x}', f's_mov_b32 s49, {f2u(1e-5):#x}')
        A(f'v_mul_f32 {vr(a + 1)}, s48, {vr(a + 1)}', f'v_max_f32 {vr(a + 1)}, 0, {vr(a + 1)}')
        A(f'v_cvt_pk_bf16_f32 {vr(ta)}, {vr(ta)}, {vr(a + 1)}')
        mu, den = tmp + 6, tmp + 7
        A(f'v_and_b32 {vr(den)}, 0xffff0000, {vr(ta)}', f'v_lshlrev_b32 {vr(mu)}, 16, {vr(ta)}')
        A(f'v_add_f32 {vr(den)}, s49, {vr(den)}')
        for k in range(5):
            A(f'v_sub_f32 {vr(d + k)}, {vr(h + k)}, {vr(mu)}')
            if k == 0:
                A(f'v_cvt_pk_bf16_f32 {vr(den)}, {vr(den)}, {vr(den)}')
            if k == 1:
                A(f'v_lshlrev_b32 {vr(den)}, 16, {vr(den)}')
            if k == 2:
                A(f'v_sqrt_f32 {vr(den)}, {vr(den)}')
        A(f'v_cvt_pk_bf16_f32 {vr(den)}, {vr(den)}, {vr(den)}')
        A(f'v_cvt_pk_bf16_f32 {vr(d + 1)}, {vr(d)}, {vr(d + 1)}')
        A(f'v_lshlrev_b32 {vr(den)}, 16, {vr(den)}')
        A(f'v_cvt_pk_bf16_f32 {vr(d + 3)}, {vr(d + 2)}, {vr(d + 3)}')
        A(f'v_rcp_f32 {vr(den)}, {vr(den)}')
        A(f'v_cvt_pk_bf16_f32 {vr(d + 4)}, {vr(d + 4)}, {vr(d + 4)}')
        A(f'v_lshlrev_b32 {vr(d)}, 16, {vr(d + 1)}', f'v_and_b32 {vr(d + 1)}, 0xffff0000, {vr(d + 1)}')
        A(f'v_lshlrev_b32 {vr(d + 2)}, 16, {vr(d + 3)}', f'v_and_b32 {vr(d + 3)}, 0xffff0000, {vr(d + 3)}')
        A(f'v_lshlrev_b32 {vr(d + 4)}, 16, {vr(d + 4)}')
        for k in range(5):
            A(f'v_mul_f32 {vr(d + k)}, {vr(d + k)}, {vr(den)}')
        o = tmp + 10
        A(f'v_cvt_pk_bf16_f32 {vr(o)}, {vr(d)}, {vr(d + 1)}', f'v_cvt_pk_bf16_f32 {vr(o + 1)}, {vr(d + 2)}, {vr(d + 3)}')
        A(f'v_cvt_pk_bf16_f32 {vr(o + 2)}, {vr(d + 4)}, {vr(d + 4)}')
        A(f'ds_write_b64 {vHNo}, {vr(o, 2)}', f'ds_write_b16 {vHNe}, {vr(o + 2)}')
        A('s_waitcnt lgkmcnt(0)', 's_barrier')

    def wait2(self, n_stream, n_help):
        A = self.A
        la, lb = self.lab('w'), self.lab('w')
        A(f's_cmp_eq_u32 {sH}, 0', f's_cbranch_scc1 {la}', f's_waitcnt vmcnt({n_help})', f's_branch {lb}')
        A.label(la)
        A(f's_waitcnt vmcnt({n_stream})')
        A.label(lb)

    def poll(self, issue, check, nops, ok, timeout=None, first_issued=False, sleep=0):
        A, D = self.A, self.pd
        top = self.lab('poll')
        A(f's_mov_b32 {sSpin}, {self.spin}')
        for k in range(D):
            if k or not first_issued:
                if k and self.pst:
                    A(f's_sleep {self.pst}')
                issue(k)
        A.label(top)
        for k in range(D):
            A(f's_waitcnt vmcnt({(D - 1) * nops})')
            check(k)
            if k == D - 1:
                A(f's_sub_u32 {sSpin}, {sSpin}, 1', f's_cbranch_scc1 {timeout or ok}')
            if sleep:
                A(f's_sleep {sleep}')
            issue(k)
        A(f's_branch {top}')

    def spin_end(self, retry, ok):
        A = self.A
        A(f's_cbranch_vccz {ok}', f's_sub_u32 {sSpin}, {sSpin}, 1', f's_cbranch_scc0 {retry}')

    def head(self):
        A, vm = self.A, self.vm
        A('s_cmp_ge_u32 s2, 256', 's_cbranch_scc1 L_end')
        A('s_load_dwordx2 s[16:17], s[0:1], 0', 's_load_dwordx2 s[20:21], s[0:1], 24', 's_load_dwordx2 s[12:13], s[0:1], 88')
        A('s_load_dwordx2 s[4:5], s[0:1], 8', 's_load_dwordx2 s[8:9], s[0:1], 16')
        A(f's_getpc_b64 {sPC}')
        A.label('L_pc')
        A(f's_sub_u32 s46, s46, L_pc-{KNAME}', 's_subb_u32 s47, s47, 0')
        A(f'v_lshlrev_b32 {vPf}, 7, v0', f'v_min_u32 {vPf}, L_codeend-{KNAME}-4, {vPf}')
        vm.op(f'global_load_dword v255, {vPf}, {sPC}')
        A(f'v_add_u32 v254, 32768, {vPf}', f'v_min_u32 v254, L_codeend-{KNAME}-4, v254', f'global_load_dword v255, v254, {sPC}')
        A('s_load_dwordx2 s[24:25], s[0:1], 64', 's_load_dwordx2 s[28:29], s[0:1], 72')
        A('s_load_dwordx2 s[94:95], s[0:1], 32', 's_load_dwordx4 s[96:99], s[0:1], 48')
        self.stamp(0)
        A(f'v_lshrrev_b32 v2, 6, v0', f'v_and_b32 {vLane}, 63, v0', f'v_readfirstlane_b32 {sW}, v2')
        A(f's_cmp_lt_u32 {sW}, 2', f's_cselect_b32 {sH}, 0, 1')
        for base, size in ((6, 0x10000000), (10, 0x10000000), (14, WS_BYTES), (18, 2304), (22, 576 * 8192), (26, 4608 * 1152), (30, 2304)):
            A(f's_mov_b32 s{base}, {size:#x}', f's_mov_b32 s{base + 1}, 0x20000')
        A(f's_and_b32 {sS}, s2, 7', 's_lshr_b32 s55, s2, 3', f's_and_b32 {sB}, s55, 1', f's_lshr_b32 {sG}, s55, 1')
        A(f's_lshr_b32 s58, {sW}, 1', 's_mul_i32 s56, s58, 1152', f's_and_b32 s59, {sW}, 1')
        A('s_lshl_b32 s57, s59, 6', 's_add_u32 s57, s57, s56', 's_add_u32 s57, s57, 1024')
        A('s_lshl_b32 s60, s59, 9', 's_add_u32 s56, s56, s60')
        t = T0
        A(f'v_lshlrev_b32 {vr(t)}, 3, {vLane}', f'v_and_b32 {vr(t + 1)}, 31, {vLane}', f'v_lshlrev_b32 {vr(t + 1)}, 1, {vr(t + 1)}')
        A(f'v_lshrrev_b32 {vr(t + 2)}, 3, {vLane}', f'v_lshlrev_b32 {vr(t + 2)}, 13, {vr(t + 2)}')
        A(f'v_bfe_u32 {vr(t + 3)}, {vLane}, 4, 1', 's_lshl_b32 s60, s59, 1', f'v_or_b32 {vr(t + 3)}, s60, {vr(t + 3)}', f'v_lshlrev_b32 {vr(t + 3)}, 1, {vr(t + 3)}')
        A(f'v_and_b32 {vr(t + 4)}, 7, {vLane}', f'v_xor_b32 {vr(t + 3)}, {vr(t + 3)}, {vr(t + 4)}', f'v_lshl_or_b32 {vr(t + 2)}, {vr(t + 3)}, 4, {vr(t + 2)}')
        A('s_and_b32 s58, s2, 3', 's_lshr_b32 s62, s2, 2', 's_lshl_b32 s62, s62, 7', 's_lshl_b32 s60, s58, 18', 's_add_u32 s62, s62, s60')
        A(f's_lshl_b32 s60, {sW}, 16', 's_add_u32 s62, s62, s60', f's_lshl_b32 s63, {sW}, 10')
        A(f'v_mov_b32 {vr(t + 3)}, 0')
        if self.kfirst:
            self.stream_addr()
        A('s_waitcnt lgkmcnt(0)')
        if self.kfirst:
            self.start_stream(False)
        vm.op(f'buffer_load_dwordx2 {vr(vXo, 2)}, {vr(t)}, {X_SRD}, s56 offen', 'x')
        vm.op(f'buffer_load_ushort {vr(vXo + 2)}, {vr(t + 1)}, {X_SRD}, s57 offen', 'x')
        vm.op(f'buffer_load_dword {vr(t + 8)}, {vr(t + 3)}, {WS_SRD}, 0 offen sc1', 'ep')
        l3 = self.lab('wq')
        for j in range(5):
            if j == 4:
                A('s_cmp_lt_u32 s58, 2', f's_cbranch_scc0 {l3}')
            A('s_mov_b32 m0, s63')
            txt = f'buffer_load_dwordx4 {vr(t + 2)}, {WA_SRD}, s62 offen {self.wpol} lds'
            vm.op(txt, 'wq') if j < 4 else A(txt)
            A('s_add_u32 s62, s62, 0x100000', 's_add_u32 s63, s63, 4096')
        A.label(l3)
        if not self.kfirst:
            self.start_stream(True)
        self.setup_early()
        self.prefill()
        self.wait2(5 + (0 if self.kfirst else 4 * self.npre), 7)
        ipa, ipb, ipc = (self.ipa, self.ipb, self.ipc) if self.deep else (0, 0, 0)
        self.more(ipa)
        h = T0 + 16
        A(f'v_lshlrev_b32 {vr(h)}, 16, {vr(vXo)}', f'v_and_b32 {vr(h + 1)}, 0xffff0000, {vr(vXo)}')
        A(f'v_lshlrev_b32 {vr(h + 2)}, 16, {vr(vXo + 1)}', f'v_and_b32 {vr(h + 3)}, 0xffff0000, {vr(vXo + 1)}')
        A(f'v_lshlrev_b32 {vr(h + 4)}, 16, {vr(vXo + 2)}')

        def wq_wait():
            self.wait2(4 * ipa + (0 if self.kfirst else 4 * self.npre), 0)
            self.more(ipb)
            A(f'v_readfirstlane_b32 {sTag}, {vr(t + 8)}')
            A(f's_mul_i32 {sTag}, {sTag}, 0x9E3779B1', f's_add_u32 {sTag}, {sTag}, 0x7F4A7C15')

        a0, b0, d0 = T0 + 48, T0 + 68, T0 + 88

        def wq_reads():
            for j in range(5):
                for u in range(2):
                    A(f'ds_read_b64_tr_b16 {vr(b0 + 4 * j + 2 * u, 2)}, {vr(T0 + 11)} offset:{j * 4096 + u * 512}')
        self.layernorm(h, T0 + 24, mid=wq_reads, pre=wq_wait)
        self.more(ipc)
        for j in range(5):
            A(f'ds_read_b128 {vr(a0 + 4 * j, 4)}, {vr(T0 + 10)} offset:{j * 256}')
        for j in range(4):
            A(f's_waitcnt lgkmcnt({4 - j})')
            A(f'v_mfma_f32_16x16x32_bf16 {vr(d0, 4)}, {vr(a0 + 4 * j, 4)}, {vr(b0 + 4 * j, 4)}, ' + ('0' if j == 0 else vr(d0, 4)))
        l4 = self.lab('q')
        A('s_waitcnt lgkmcnt(0)', 's_and_b32 s60, s2, 3', 's_cmp_lt_u32 s60, 2', f's_cbranch_scc0 {l4}')
        A(f'v_mfma_f32_16x16x32_bf16 {vr(d0, 4)}, {vr(a0 + 16, 4)}, {vr(b0 + 16, 4)}, {vr(d0, 4)}')
        A.label(l4)
        A(f'v_mov_b32 {vr(a0 + 1)}, {sTag}', f'v_mov_b32 {vr(a0 + 3)}, {sTag}', 's_mov_b32 s60, 0x20000', 's_nop 4')
        A(f'v_mov_b32 {vr(a0)}, {vr(d0)}', f'v_mov_b32 {vr(a0 + 2)}, {vr(d0 + 1)}', 's_mov_b64 exec, 0xffff')
        A(f'buffer_store_dwordx2 {vr(a0, 2)}, {vQw}, {WS_SRD}, 0 offen sc1', f'buffer_store_dwordx2 {vr(a0 + 2, 2)}, {vQw}, {WS_SRD}, s60 offen sc1')
        A('s_mov_b64 exec, -1')
        self.stamp(1)
        A(f's_mov_b32 {sSpin}, {self.spin}')
        l5, l6 = self.lab('hq'), self.lab('hq')
        A(f's_cmp_eq_u32 {sH}, 0', f's_cbranch_scc0 {l5}')
        if self.deep:
            self.more(2, self.hcnt, False)
            self.setup_consts()
            self.more(2, self.hcnt, False)
            self.setup_roles()
            self.more(15 - self.nissued, self.hcnt, False)
        else:
            self.more(7 - self.nissued, None, False)
            self.setup_consts()
            self.setup_roles()
        A(f's_branch {l6}')
        A.label(l5)
        qp = T0 + 48
        A(f's_lshl_b32 s60, {sB}, 17', f's_lshl_b32 s61, {sG}, 13', 's_add_u32 s60, s60, s61', 's_lshl_b32 s61, s59, 12', 's_add_u32 s60, s60, s61')
        A(f's_add_u32 s60, s60, {QBUF}', f'v_lshrrev_b32 {vQg}, 5, {vLane}', f'v_lshlrev_b32 {vQg}, 11, {vQg}', f'v_and_b32 {vr(qp)}, 31, {vLane}')
        A(f'v_lshl_add_u32 {vQg}, {vr(qp)}, 4, {vQg}', f'v_add_u32 {vQg}, s60, {vQg}')

        def qloads():
            for k in range(4):
                A(f'buffer_load_dwordx4 {vr(qp + 4 * k, 4)}, {vQg}, {WS_SRD}, 0 offen offset:{512 * k} sc1')
        if self.hset:
            self.setup_consts()
            self.setup_roles()

        def stage_tile():
            A(f's_add_u32 s62, {sT}, {5 * 131072}', 's_lshl_b32 s63, s59, 14', f's_add_u32 s63, s63, {LW2}')
            for pc in range(4):
                A('s_mov_b32 m0, s63', 's_add_u32 s63, s63, 4096')
                for t in range(4):
                    A(f'buffer_load_dwordx4 {(vK0, vK1, vV0, vV1)[pc]}, {K_SRD if pc < 2 else V_SRD}, s62 offen offset:{t * 1024} {self.pol} lds')
        lf, li, lc = self.lab('hf'), self.lab('hi'), self.lab('hc')
        ns = 16 if (self.stage and not self.spos) else 0
        if self.stage and self.spos:
            stage_tile()
        A(f's_cmp_eq_u32 {sRole}, 0', f's_cbranch_scc0 {lf}')
        self.setup_dma_t2()
        self.dma_t2(0, self.ao, 0)
        qloads()
        if ns:
            stage_tile()
        self.dma_t2(self.ao, self.bo, 0)
        A(f's_waitcnt vmcnt({ns + 3 * (self.bo - self.ao)})', f's_branch {lc}')
        A.label(lf)
        A(f's_cmp_eq_u32 {sRole}, 1', f's_cbranch_scc0 {li}')
        self.setup_dma_ffn()
        if self.hset > 1:
            self.setup_w2()
        self.dma_w13(0, self.a13, 0)
        qloads()
        if ns:
            stage_tile()
        self.dma_w13(self.a13, self.b13, 0)
        A(f's_waitcnt vmcnt({ns + 2 * (self.b13 - self.a13)})', f's_branch {lc}')
        A.label(li)
        qloads()
        if ns:
            stage_tile()
        A(f's_waitcnt vmcnt({ns})')
        chk, ok = lc, self.lab('qok')
        A.label(chk)
        for k in range(8):
            A(f'v_xor_b32 {vr(qp + 16 + k)}, {sTag}, {vr(qp + 2 * k + 1)}')
        A(f'v_or3_b32 {vr(qp + 16)}, {vr(qp + 16)}, {vr(qp + 17)}, {vr(qp + 18)}', f'v_or3_b32 {vr(qp + 19)}, {vr(qp + 19)}, {vr(qp + 20)}, {vr(qp + 21)}')
        A(f'v_or3_b32 {vr(qp + 16)}, {vr(qp + 16)}, {vr(qp + 22)}, {vr(qp + 23)}', f'v_or_b32 {vr(qp + 16)}, {vr(qp + 16)}, {vr(qp + 19)}')
        A(f'v_cmp_ne_u32 vcc, 0, {vr(qp + 16)}')
        A(f's_cbranch_vccz {ok}', f's_sub_u32 {sSpin}, {sSpin}, 1', f's_cbranch_scc1 {ok}')
        qloads()
        A('s_waitcnt vmcnt(0)', f's_branch {chk}')
        A.label(ok)
        for c in range(2):
            o = qp + 2 * c
            A(f'v_add_f32 {vr(o)}, {vr(o)}, {vr(o + 4)}', f'v_add_f32 {vr(o + 8)}, {vr(o + 8)}, {vr(o + 12)}', f'v_add_f32 {vr(o)}, {vr(o)}, {vr(o + 8)}')
        A(f'v_cvt_pk_bf16_f32 {vr(qp)}, {vr(qp)}, {vr(qp + 2)}')
        A(f's_lshl_b32 s60, {sW}, 8', f's_add_u32 s60, s60, {QL - 512}', f'v_lshl_add_u32 {vr(qp + 1)}, {vLane}, 2, s60')
        A(f'ds_write_b32 {vr(qp + 1)}, {vr(qp)}', 's_waitcnt lgkmcnt(0)')
        if ns:
            la, lb2 = self.lab('sw'), self.lab('sw')
            A(f's_cmp_eq_u32 {sRole}, 0', f's_cbranch_scc0 {la}', f's_waitcnt vmcnt({3 * (self.bo - self.ao)})', f's_branch {l6}')
            A.label(la)
            A(f's_cmp_eq_u32 {sRole}, 1', f's_cbranch_scc0 {lb2}', f's_waitcnt vmcnt({2 * (self.b13 - self.a13)})', f's_branch {l6}')
            A.label(lb2)
            A('s_waitcnt vmcnt(0)')
        A.label(l6)
        A('s_barrier')
        self.stamp(2)

    def start_stream(self, with_addr):
        A = self.A
        if with_addr:
            self.stream_addr()
        self.more(self.npre)

    def more(self, k, wait=None, guard=True):
        A = self.A
        if k <= 0:
            return
        ls = self.lab('st')
        if guard:
            A(f's_cmp_eq_u32 {sH}, 0', f's_cbranch_scc0 {ls}')
        for _ in range(k):
            n = self.nissued
            staged = self.stage and 20 <= n < 24
            if wait is not None and not staged:
                A(f's_waitcnt vmcnt({wait})')
            if n and n % 4 == 0:
                A(f's_add_u32 {sT}, {sT}, 131072')
            if staged:
                for t in range(4):
                    A(f'ds_read_b128 {ar((n & 7) * 16 + 4 * t, 4)}, {vr(T0 + 60)} offset:{(n - 20) * 4096 + t * 1024}')
            else:
                self.piece(n, track=False)
            self.nissued += 1
        if guard:
            A.label(ls)

    def stream_addr(self):
        A = self.A
        A(f'v_bfe_u32 {vK0}, {vLane}, 2, 2', f'v_lshlrev_b32 {vK0}, 8, {vK0}', f'v_lshrrev_b32 {vK1}, 4, {vLane}')
        A(f'v_lshl_or_b32 {vK0}, {vK1}, 6, {vK0}', f'v_and_b32 {vK1}, 3, {vLane}', f'v_lshl_or_b32 {vK0}, {vK1}, 4, {vK0}')
        A(f'v_add_u32 {vK1}, 4096, {vK0}', f'v_lshlrev_b32 {vV0}, 4, {vLane}', f'v_add_u32 {vV1}, 4096, {vV0}')
        A(f's_lshl_b32 {sPool}, {sB}, 4', f's_add_u32 {sPool}, {sPool}, {sG}', f's_lshl_b32 {sPool}, {sPool}, 23')
        A(f's_lshl_b32 s60, {sS}, 1', 's_add_u32 s60, s60, s59', 's_lshl_b32 s60, s60, 13', f's_add_u32 {sT}, {sPool}, s60')
        A(f's_add_u32 {sPool}, {sPool}, {self.NS * 131072}')

    def setup_early(self):
        A = self.A
        t = T0 + 4
        g, r, c, j = 250, 251, 252, 253
        self.fields = (g, r, c, j)
        A(f'v_lshrrev_b32 {vr(g)}, 4, {vLane}', f'v_bfe_u32 {vr(r)}, {vLane}, 2, 2', f'v_and_b32 {vr(c)}, 3, {vLane}', f'v_and_b32 {vr(j)}, 15, {vLane}')
        A(f's_add_u32 s60, s56, {HN}', f'v_lshl_add_u32 {vHNo}, {vLane}, 3, s60')
        A(f'v_and_b32 {vr(t)}, 31, {vLane}', f's_add_u32 s60, s57, {HN}', f'v_lshl_add_u32 {vHNe}, {vr(t)}, 1, s60')
        A(f's_lshl_b32 s60, {sW}, 4', f's_add_u32 s60, s60, {STAT}', f'v_mov_b32 {vStW}, s60')
        A(f's_lshr_b32 s60, {sW}, 1', 's_lshl_b32 s60, s60, 5', f's_add_u32 s60, s60, {STAT}', f'v_mov_b32 {vStR}, s60')
        A(f'v_and_b32 {vr(t)}, 1, {vLane}', f'v_mul_u32_u24 {vr(t)}, 1152, {vr(t)}', f'v_lshl_add_u32 {vr(t)}, {vr(g)}, 4, {vr(t)}')
        A(f'v_add_u32 {vHNa}, {HN}, {vr(t)}')
        A('s_lshl_b32 s60, s58, 6', f'v_add_u32 {vr(T0 + 10)}, s60, {vHNa}')
        A(f'v_lshrrev_b32 {vr(t)}, 1, {vr(r)}', f'v_and_b32 {vr(t + 1)}, 1, {vr(g)}', f'v_lshl_or_b32 {vr(t)}, {vr(t + 1)}, 1, {vr(t)}')
        A(f'v_xor_b32 {vr(t)}, {sW}, {vr(t)}', f'v_lshlrev_b32 {vr(t)}, 5, {vr(t)}', f'v_lshl_add_u32 {vr(t)}, {vr(c)}, 3, {vr(t)}')
        A(f'v_lshl_add_u32 {vr(t + 1)}, {vr(g)}, 3, {vr(r)}', f'v_lshl_add_u32 {vr(T0 + 11)}, {vr(t + 1)}, 7, {vr(t)}')
        A('s_lshl_b32 s60, s2, 9', f's_lshl_b32 s61, {sW}, 7', 's_add_u32 s60, s60, s61', f's_add_u32 s60, s60, {QBUF}', f'v_lshl_add_u32 {vQw}, {vr(j)}, 3, s60')
        A(f's_lshl_b32 s60, {sS}, 2', 's_add_u32 s60, s60, s55', 's_and_b32 s60, s60, 31')
        lr, lq = self.lab('role'), self.lab('role')
        A('s_and_b32 s61, s60, 3', 's_lshr_b32 s60, s60, 2', 's_cmp_lt_u32 s61, 2', f's_cbranch_scc0 {lq}')
        A('s_mul_i32 s62, s61, 5', 's_lshl_b32 s63, s61, 1', 's_sub_u32 s63, s63, 5', 's_mov_b32 s61, 5', f's_branch {lq}x')
        A.label(lq)
        A('s_lshl_b32 s62, s61, 2', 's_sub_u32 s63, s62, 8', 's_add_u32 s62, s62, 2', 's_mov_b32 s61, 4')
        A.label(lq + 'x')
        A(f's_mov_b32 {sRole}, 1', f's_mul_i32 {sGF}, {sS}, 18', f's_add_u32 {sGF}, {sGF}, s62', f's_add_u32 {sGF}, {sGF}, s60', f's_mov_b32 {sN}, s61')
        A('s_cmp_lt_u32 s60, s61', f's_cbranch_scc1 {lr}')
        A(f's_mov_b32 {sRole}, 0', f's_mov_b32 {sGF}, {sS}', f's_add_u32 {sN}, s63, s60', 's_add_u32 s60, s60, s61', 's_cmp_eq_u32 s60, 12', f's_cbranch_scc0 {lr}')
        A(f's_mov_b32 {sRole}, 2')
        A.label(lr)
        A(f's_lshl_b32 s60, {sG}, 1', 's_add_u32 s60, s60, s59', f's_lshl_b32 s61, {sB}, 3', f's_add_u32 s61, s61, {sS}')
        A('s_lshl_b32 s62, s60, 12', 's_lshl_b32 s63, s61, 8', 's_add_u32 s62, s62, s63', f's_add_u32 s62, s62, {OBUF}')
        A(f'v_lshl_add_u32 {vOad}, {vLane}, 2, s62')
        A('s_lshl_b32 s62, s60, 4', 's_add_u32 s62, s62, s61', f's_mul_i32 s62, s62, {self.sstr}', f's_add_u32 s62, s62, {SBUF}')
        A(f'v_mov_b32 {vSad}, s62')
        A('s_lshl_b32 s60, s55, 8', f's_add_u32 s60, s60, {CNT}', f'v_mov_b32 {vCa}, s60')
        A(f'v_mov_b32 {vr(t)}, {CTR}', f'v_mov_b32 {vr(t + 1)}, 0', f'ds_write_b32 {vr(t)}, {vr(t + 1)}')

    def prefill(self, again=False):
        A = self.A
        t = T0
        l0, l1, l2 = self.lab('pf'), self.lab('pf'), self.lab('pf')
        A(f's_cmp_eq_u32 {sH}, 0', f's_cbranch_scc1 {l2}')
        for k in range(4):
            A(f'v_mov_b32 {vr(t + 4 + k)}, -1')
        A(f'buffer_store_dword {vr(t + 4)}, {vOad}, {WS_SRD}, 0 offen sc1')
        A(f'buffer_store_dwordx2 {vr(t + 4, 2)}, {vSad}, {WS_SRD}, 0 offen sc1')
        if not again:
            A(f's_or_b32 s60, {sS}, s59', 's_cmp_eq_u32 s60, 0', f's_cbranch_scc0 {l0}')
            A(f'buffer_store_dword {vr(t + 3)}, {vCa}, {WS_SRD}, 0 offen sc1')
            A.label(l0)
        A(f's_cmp_eq_u32 {sRole}, 0', f's_cbranch_scc0 {l1}')
        A(f's_mul_i32 s60, {sGF}, 4608', 's_mul_i32 s61, s59, 2304', 's_add_u32 s60, s60, s61', f's_mul_i32 s61, {sN}, 192')
        A('s_add_u32 s60, s60, s61', f's_add_u32 s60, s60, {ABUF}', f'v_lshlrev_b32 {vr(t + 9)}, 2, {vLane}')
        A('s_mov_b32 exec_hi, 0xffff')
        A(f'buffer_store_dword {vr(t + 4)}, {vr(t + 9)}, {WS_SRD}, s60 offen sc1')
        A('s_mov_b64 exec, -1')
        A.label(l1)
        A(f's_cmp_eq_u32 {sRole}, 1', f's_cbranch_scc0 {l2}')
        A(f's_lshl_b32 s60, {sGF}, 7', f's_mul_i32 s61, s59, {18 * 18432}', 's_add_u32 s60, s60, s61', f's_add_u32 s60, s60, {FBUF}')
        A(f'v_lshrrev_b32 {vr(t + 9)}, 3, {vLane}', f'v_mul_u32_u24 {vr(t + 9)}, 18432, {vr(t + 9)}', f'v_and_b32 {vr(t + 2)}, 7, {vLane}', f'v_lshl_add_u32 {vr(t + 9)}, {vr(t + 2)}, 4, {vr(t + 9)}')
        for k in range(3):
            if k == 2:
                A('s_mov_b64 exec, 0xffff')
            A(f'buffer_store_dwordx4 {vr(t + 4, 4)}, {vr(t + 9)}, {WS_SRD}, s60 offen sc1', f's_add_u32 s60, s60, {8 * 18432}')
        A('s_mov_b64 exec, -1')
        A.label(l2)

    def setup_consts(self):
        A = self.A
        t = T0 + 4
        A(f's_mov_b32 {sScale}, {f2u(128 ** -0.5):#x}', f's_mov_b32 {sL2e}, {f2u(1.4426950408889634):#x}')
        for m, v in ((40, 0x22222222), (42, 0x44444444), (44, 0x88888888), (74, 0xff00ff00)):
            A(f's_mov_b32 s{m}, {v:#x}', f's_mov_b32 s{m + 1}, {v:#x}')
        A('s_mov_b32 s72, 0', 's_mov_b32 s73, -1')
        A(f'v_mov_b32 {vM}, 0xff800000', f'v_mov_b32 {vL}, 0')
        for r in range(4):
            A(f'v_mov_b32 {vr(ACC + r)}, 0')
        A(f'v_bfe_u32 {vr(t)}, {vLane}, 3, 1', f'v_mul_u32_u24 {vr(t)}, 0x202, {vr(t)}', f'v_add_u32 {vr(t)}, 0x100, {vr(t)}')
        A(f'v_or_b32 {vr(t + 1)}, 0x0c0c0000, {vr(t)}', f'v_lshlrev_b32 {vr(t)}, 16, {vr(t)}', f'v_or_b32 {vr(t)}, 0x0c0c, {vr(t)}')
        A(f'v_and_b32 {vr(t + 2)}, 1, {vLane}', f'v_cmp_eq_u32 vcc, 1, {vr(t + 2)}', f'v_cndmask_b32 {vr(t)}, {vr(t + 1)}, {vr(t)}, vcc')
        A(f'v_bfe_u32 {vr(t + 1)}, {vLane}, 1, 2', f'v_mov_b32 {vr(t + 2)}, 0x0c0c0c0c')
        for d in range(4):
            A(f'v_cmp_eq_u32 vcc, {d}, {vr(t + 1)}', f'v_cndmask_b32 {vr(SEL + d)}, {vr(t + 2)}, {vr(t)}, vcc')
        g, r, c, j = self.fields
        A(f'v_and_b32 {vr(t)}, 1, {vr(r)}', f'v_lshlrev_b32 {vr(t)}, 8, {vr(t)}', f'v_lshl_add_u32 {vr(t)}, {vr(g)}, 6, {vr(t)}')
        A(f'v_lshl_add_u32 {vr(t)}, {vr(c)}, 4, {vr(t)}', f'v_add_u32 {vQr}, {QL}, {vr(t)}')
        A(f'v_lshrrev_b32 {vr(t)}, 1, {vr(g)}', f'v_lshlrev_b32 {vr(t + 1)}, 9, {vr(t)}', f'v_lshl_add_u32 {vr(t + 1)}, {vr(j)}, 5, {vr(t + 1)}')
        A(f'v_and_b32 {vr(t + 2)}, 1, {vr(g)}', f'v_lshl_add_u32 {vr(t + 1)}, {vr(t + 2)}, 4, {vr(t + 1)}')
        A(f's_lshl_b32 s60, {sW}, 10', f's_add_u32 s60, s60, {CMB}', f'v_add_u32 {vCmbW}, s60, {vr(t + 1)}')
        A(f'v_lshlrev_b32 {vr(t)}, 3, {vr(t)}', f'v_add_u32 {vMstR}, {MST}, {vr(t)}')
        A(f's_lshl_b32 s60, {sW}, 4')
        A(f'v_bfe_u32 {vr(t)}, {vLane}, 2, 1', f'v_lshlrev_b32 {vr(t)}, 3, {vr(t)}', f's_add_u32 s60, s60, {MST}', f'v_add_u32 {vMstW}, s60, {vr(t)}')
        A(f'v_lshlrev_b32 {vr(t)}, 7, {vr(g)}', f'v_bfe_u32 {vr(t + 1)}, {vLane}, 1, 1', f'v_lshl_add_u32 {vr(t)}, {vr(t + 1)}, 6, {vr(t)}')
        A(f'v_lshl_add_u32 {vr(t)}, {vr(r)}, 4, {vr(t)}', f'v_and_b32 {vr(t + 1)}, 1, {vLane}', f'v_lshl_add_u32 {vr(t)}, {vr(t + 1)}, 3, {vr(t)}')
        A('s_lshl_b32 s60, s59, 9', f's_add_u32 s60, s60, {CMB}', f'v_add_u32 {vCmbR}, s60, {vr(t)}')

    def setup_dma_t2(self):
        A = self.A
        t = T0 + 4
        A('s_mov_b32 s20, s94', 's_mov_b32 s21, s95', f's_mov_b32 s22, {4096 * 1152}', 's_mov_b32 s23, 0x20000')
        for i in range(3):
            A(f'v_add_u32 {vr(t)}, {64 * i}, {vLane}', f'v_mul_u32_u24 {vr(t + 1)}, 171, {vr(t)}', f'v_lshrrev_b32 {vr(t + 1)}, 10, {vr(t + 1)}')
            A(f'v_mul_u32_u24 {vr(t + 2)}, 1056, {vr(t + 1)}', f'v_lshl_add_u32 {vr(RA + i)}, {vr(t)}, 4, {vr(t + 2)}')
        A(f's_lshl_b32 s61, {sGF}, 2', 's_lshl_b32 s62, s59, 1', 's_add_u32 s61, s61, s62')
        A(f's_mul_i32 s77, s61, {128 * 1152}', f's_mul_i32 s60, {sN}, 96', 's_add_u32 s77, s77, s60')
        A('s_mul_i32 s78, s59, 24576')

    def setup_dma_ffn(self):
        A = self.A
        g, r, c, j = self.fields
        t = T0 + 4
        A('s_mov_b32 s20, s96', 's_mov_b32 s21, s97', 's_mov_b32 s64, s98', 's_mov_b32 s65, s99')
        A(f's_mov_b32 s22, {576 * 9216}', 's_mov_b32 s23, 0x20000', f's_mov_b32 s66, {576 * 9216}', 's_mov_b32 s67, 0x20000')
        A('s_lshl_b32 s60, s59, 4', f'v_lshrrev_b32 {vr(t)}, 2, {vLane}', f'v_add_u32 {vr(t)}, s60, {vr(t)}')
        A(f'v_bfe_u32 {vr(t + 1)}, {vr(t)}, 3, 1', f'v_xor_b32 {vr(t + 1)}, {vr(c)}, {vr(t + 1)}', f'v_mul_u32_u24 {vr(t)}, 9216, {vr(t)}')
        A(f'v_lshl_add_u32 {vr(HA)}, {vr(t + 1)}, 4, {vr(t)}', f'v_xor_b32 {vr(HA + 1)}, 32, {vr(HA)}')
        A(f's_lshl_b32 s77, {sGF}, 6', 's_lshl_b32 s78, s59, 10')

    def setup_w2(self):
        A = self.A
        t = T0 + 4
        A('s_mul_i32 s60, s59, 1152')
        for i in range(18):
            A(f's_add_u32 s61, s60, {64 * i}', f'v_add_u32 {vr(t)}, s61, {vLane}')
            A(f'v_mul_u32_u24 {vr(t + 1)}, 14564, {vr(t)}', f'v_lshrrev_b32 {vr(t + 1)}, 20, {vr(t + 1)}')
            A(f'v_and_b32 {vr(t + 2)}, 2, {vr(t + 1)}', f'v_bfe_u32 {vr(t + 1)}, {vr(t + 1)}, 3, 1', f'v_lshl_or_b32 {vr(t + 1)}, {vr(t + 1)}, 2, {vr(t + 2)}')
            A(f'v_xor_b32 {vr(t)}, {vr(t)}, {vr(t + 1)}', f'v_lshlrev_b32 {vr(HA + 2 + i)}, 4, {vr(t)}')

    def setup_roles(self):
        A = self.A
        g, r, c, j = self.fields
        t = T0 + 4
        lf, le = self.lab('rf'), self.lab('re')
        A(f's_cmp_eq_u32 {sRole}, 0', f's_cbranch_scc0 {lf}')
        A(f'v_lshl_add_u32 {vr(t)}, {vr(g)}, 2, {vr(r)}', f'v_mul_u32_u24 {vr(t)}, 96, {vr(t)}', f'v_lshl_add_u32 {vr(t)}, {vr(c)}, 3, {vr(t)}')
        A(f's_mul_i32 s60, {sW}, 12288', f'v_add_u32 {vr(RA + 3)}, s60, {vr(t)}')
        A(f's_lshl_b32 s61, {sGF}, 2', f's_add_u32 s61, s61, {sW}')
        A(f'v_lshlrev_b32 {vr(t)}, 8, {vr(j)}', f'v_lshl_add_u32 {vr(t)}, {vr(g)}, 4, {vr(t)}')
        A('s_lshl_b32 s60, s61, 12', f's_add_u32 s60, s60, {OBUF}', f'v_add_u32 {vr(RA + 4)}, s60, {vr(t)}')
        A(f'v_lshl_add_u32 {vr(t)}, {vr(g)}, 2, {vr(j)}', f'v_and_b32 {vr(t)}, 7, {vr(t)}', f'v_lshrrev_b32 {vr(t + 1)}, 1, {vr(g)}')
        A(f'v_lshl_add_u32 {vr(t)}, {vr(t + 1)}, 3, {vr(t)}', f's_mul_i32 s60, s61, {16 * self.sstr}', f's_add_u32 s60, s60, {SBUF}', f'v_mad_u32_u24 {vr(RA + 5)}, {vr(t)}, {self.sstr // 2}, 0', f'v_lshl_add_u32 {vr(RA + 5)}, {vr(RA + 5)}, 1, s60')
        A(f'v_mul_u32_u24 {vr(t)}, 192, {vr(t + 1)}', f'v_lshl_add_u32 {vr(t)}, {vr(j)}, 2, {vr(t)}')
        A(f's_mul_i32 s60, {sW}, 384', f's_add_u32 s60, s60, {RED}', f'v_add_u32 {vr(t)}, s60, {vr(t)}', f'v_add_u32 {vr(RA + 7)}, 128, {vr(t)}')
        A(f'v_and_b32 {vr(t + 1)}, 1, {vr(g)}', f'v_lshl_add_u32 {vr(RA + 6)}, {vr(t + 1)}, 6, {vr(t)}')
        A(f's_mul_i32 s60, {sW}, 192', f's_add_u32 s60, s60, {RED}', f'v_lshl_add_u32 {vr(RA + 8)}, {vLane}, 2, s60')
        A(f's_mul_i32 s60, {sGF}, 4608', f's_mul_i32 s62, {sW}, 2304', 's_add_u32 s60, s60, s62', f's_mul_i32 s62, {sN}, 192')
        A('s_add_u32 s60, s60, s62', f's_add_u32 s60, s60, {ABUF}', f'v_lshl_add_u32 {vr(RA + 9)}, {vLane}, 2, s60')
        A(f's_mul_i32 s60, {sGF}, 9', f's_add_u32 s60, s60, {sN}', 's_and_b32 s61, s60, 1', 's_lshr_b32 s60, s60, 1', 's_min_u32 s60, s60, 35')
        A('s_mul_i32 s76, s61, 576', 's_lshl_b32 s62, s60, 4', 's_add_u32 s76, s76, s62')
        A(f'v_and_b32 {vr(t)}, 7, {vLane}', f'v_mul_u32_u24 {vr(t + 1)}, 4608, {vr(t)}', f'v_bfe_u32 {vr(t + 2)}, {vLane}, 3, 2', f'v_lshl_add_u32 {vr(t + 1)}, {vr(t + 2)}, 4, {vr(t + 1)}')
        A('s_lshl_b32 s62, s76, 2', f's_add_u32 s62, s62, {ABUF}', f'v_add_u32 {vr(RA + 10)}, s62, {vr(t + 1)}')
        A(f'v_lshlrev_b32 {vr(RA + 14)}, 4, {vr(t + 2)}', f'v_add_u32 {vr(RA + 14)}, {HRES}, {vr(RA + 14)}')
        A('s_lshl_b32 s62, s76, 1', f'v_lshl_add_u32 {vr(RA + 12)}, {vr(t + 2)}, 3, s62', f'v_lshl_add_u32 {vr(RA + 17)}, {vr(j)}, 1, s62')
        A('s_mul_i32 s62, s60, 43', 's_lshr_b32 s62, s62, 7', f'v_mul_u32_u24 {vr(t)}, 12, {vr(t)}', f'v_add_u32 {vr(t)}, s62, {vr(t)}')
        A(f's_lshl_b32 s62, {sS}, 14', f's_add_u32 s62, s62, {FLAG2}', f'v_lshl_add_u32 {vr(RA + 13)}, {vr(t)}, 7, s62')
        A('s_mul_i32 s60, s60, 18432', 's_lshl_b32 s61, s61, 6', 's_add_u32 s60, s60, s61', f's_mul_i32 s61, {sW}, {36 * 128}', 's_add_u32 s60, s60, s61')
        A(f's_add_u32 s60, s60, {FBUF}', f'v_lshlrev_b32 {vr(t)}, 7, {vr(g)}', f'v_lshl_add_u32 {vr(t)}, {vr(r)}, 7, 0', f'v_lshl_add_u32 {vr(t)}, {vr(g)}, 9, {vr(t)}')
        A(f'v_lshl_add_u32 {vr(t)}, {vr(c)}, 4, {vr(t)}', f'v_add_u32 {vr(RA + 11)}, s60, {vr(t)}')
        A(f's_lshl_b32 s60, {sW}, 8', f's_add_u32 s60, s60, {FIN}', f'v_lshlrev_b32 {vr(t)}, 6, {vr(g)}', f'v_lshl_add_u32 {vr(t)}, {vr(c)}, 4, {vr(t)}', f'v_add_u32 {vr(RA + 15)}, s60, {vr(t)}')
        A(f'v_lshlrev_b32 {vr(t)}, 8, {vr(g)}', f'v_lshl_add_u32 {vr(t)}, {vr(j)}, 2, {vr(t)}', f'v_add_u32 {vr(RA + 16)}, {FIN}, {vr(t)}')
        A(f's_lshl_b32 s60, {sGF}, 1', f's_lshr_b32 s61, {sW}, 1', 's_add_u32 s60, s60, s61', 's_lshl_b32 s60, s60, 11', f's_add_u32 s60, s60, {FLAG1}', f'v_lshl_add_u32 {vr(RA + 19)}, {vr(j)}, 7, s60')
        A(f's_mul_i32 s60, {sGF}, 12', f's_add_u32 s60, s60, {sN}', 's_lshl_b32 s60, s60, 7', f's_add_u32 s60, s60, {FLAG2}', f'v_lshl_add_u32 {vr(RA + 18)}, {vLane}, 14, s60')
        A(f's_branch {le}')
        A.label(lf)
        A(f's_cmp_eq_u32 {sRole}, 1', f's_cbranch_scc0 {le}')
        A(f'v_and_b32 {vr(t)}, 1, {vr(g)}', f'v_and_b32 {vr(t + 1)}, 2, {vr(c)}', f'v_or_b32 {vr(t)}, {vr(t)}, {vr(t + 1)}', f'v_xor_b32 {vr(t)}, {sW}, {vr(t)}')
        A(f'v_lshlrev_b32 {vr(t)}, 4, {vr(t)}', f'v_lshl_add_u32 {vr(t)}, {vr(t + 1)}, 10, {vr(t)}', f'v_and_b32 {vr(t + 1)}, 1, {vr(c)}')
        A(f'v_lshl_add_u32 {vr(t)}, {vr(t + 1)}, 3, {vr(t)}', f'v_lshl_add_u32 {vr(t + 1)}, {vr(g)}, 3, {vr(r)}')
        A(f'v_lshl_add_u32 {vr(RA + 10)}, {vr(t + 1)}, 6, {vr(t)}', f'v_add_u32 {vr(RA + 11)}, 36864, {vr(RA + 10)}')
        A(f'v_mul_u32_u24 {vr(t + 1)}, 1152, {vr(t + 1)}', f'v_lshl_add_u32 {vr(t + 1)}, {vr(c)}, 3, {vr(t + 1)}', f'v_add_u32 {vr(t + 1)}, {LW2}, {vr(t + 1)}')
        A(f'v_lshrrev_b32 {vr(t)}, 1, {vr(r)}', f'v_and_b32 {vr(t + 2)}, 1, {vr(g)}', f'v_lshl_or_b32 {vr(t)}, {vr(t + 2)}, 1, {vr(t)}')
        A(f's_mul_i32 s60, {sW}, 9')
        for m in range(4):
            A(f's_add_u32 s61, s60, {m}', f'v_xor_b32 {vr(t + 2)}, s61, {vr(t)}', f'v_lshl_add_u32 {vr(RA + 12 + m)}, {vr(t + 2)}, 5, {vr(t + 1)}')
        A(f's_lshr_b32 s60, {sW}, 1', 's_mul_i32 s60, s60, 2304', f's_and_b32 s61, {sW}, 1', 's_lshl_b32 s62, s61, 10', 's_add_u32 s62, s62, s60')
        A(f's_add_u32 s62, s62, {ABUF}', f'v_lshl_add_u32 {vr(RA + 16)}, {vLane}, 4, s62')
        A('s_lshl_b32 s62, s61, 7', 's_add_u32 s62, s62, s60', f's_add_u32 s62, s62, {ABUF + 2048}')
        A(f'v_and_b32 {vr(t)}, 31, {vLane}', f'v_lshl_add_u32 {vr(RA + 17)}, {vr(t)}, 2, s62')
        A(f'v_and_b32 {vr(t)}, 7, {vLane}', 's_mul_i32 s62, s61, 5', f'v_add_u32 {vr(t + 1)}, s62, {vr(t)}', f'v_min_u32 {vr(t + 1)}, 11, {vr(t + 1)}')
        A(f'v_add_u32 {vr(t + 2)}, 4, {vr(t)}', f'v_cmp_lt_u32 vcc, 5, {vr(t)}', 's_cmp_eq_u32 s61, 0', 's_cselect_b64 vcc, vcc, 0', f'v_cndmask_b32 {vr(t + 1)}, {vr(t + 1)}, {vr(t + 2)}, vcc')
        A(f'v_lshrrev_b32 {vr(t)}, 3, {vLane}', f'v_mul_u32_u24 {vr(t)}, 12, {vr(t)}', f'v_add_u32 {vr(t)}, {vr(t)}, {vr(t + 1)}')
        A(f's_lshl_b32 s62, {sS}, 14', f's_add_u32 s62, s62, {FLAG2}', f'v_lshl_add_u32 {vr(RA + 21)}, {vr(t)}, 7, s62')
        A(f'v_bfe_u32 {vr(t)}, {vLane}, 3, 1', f'v_lshlrev_b32 {vr(t)}, 6, {vr(t)}', f'v_and_b32 {vr(t + 1)}, 7, {vLane}', f'v_lshl_add_u32 {vr(t)}, {vr(t + 1)}, 1, {vr(t)}')
        A(f's_lshl_b32 s60, {sW}, 4', f's_add_u32 s60, s60, {HH}', f'v_add_u32 {vr(RA + 18)}, s60, {vr(t)}')
        A(f'v_and_b32 {vr(t)}, 1, {vLane}', f'v_lshlrev_b32 {vr(t + 1)}, 6, {vr(t)}', f'v_lshl_add_u32 {vr(t + 1)}, {vr(g)}, 4, {vr(t + 1)}', f'v_add_u32 {vr(RA + 19)}, {HH}, {vr(t + 1)}')
        A(f'v_lshlrev_b32 {vr(t)}, 6, {vr(t)}', f'v_lshl_add_u32 {vr(t)}, {vr(g)}, 4, {vr(t)}')
        A(f's_mul_i32 s60, {sW}, {9 * 18432}', f's_lshl_b32 s61, {sGF}, 7', 's_add_u32 s60, s60, s61', f's_add_u32 s60, s60, {FBUF}', f'v_add_u32 {vr(RA + 20)}, s60, {vr(t)}')
        A(f's_mul_i32 s79, {sGF}, 36864')
        A(f'v_lshlrev_b32 {vr(t)}, 4, {vr(g)}', f'v_add_u32 {vr(t)}, {ONES}, {vr(t)}', f'v_cmp_gt_u32 vcc, 2, {vr(j)}', f'v_cndmask_b32 {vr(RA + 22)}, {vr(t)}, {vHNa}, vcc')
        A(f'v_bfe_u32 {vr(t)}, {vLane}, 3, 1', f'v_lshlrev_b32 {vr(t)}, 5, {vr(t)}', f'v_add_u32 {vr(RA + 23)}, {STAT}, {vr(t)}')
        A(f'v_lshrrev_b32 {vr(t + 1)}, 1, {vr(j)}', f'v_lshlrev_b32 {vr(t)}, 4, {vr(g)}', f'v_add_u32 {vr(t)}, {ZERO}, {vr(t)}')
        for tau in range(8):
            A(f'v_cmp_eq_u32 vcc, {tau}, {vr(t + 1)}', f'v_cndmask_b32 {vr(HA + 24 + tau)}, {vr(t)}, {vr(RA + 19)}, vcc')
        A(f'v_mul_u32_u24 {vr(t + 1)}, 18432, {vr(t + 1)}', f'v_add_u32 {vr(HA + 32)}, {vr(RA + 20)}, {vr(t + 1)}')
        A(f'v_lshlrev_b32 {vr(t)}, 2, {vr(j)}', f'v_add_u32 {vr(t)}, {ZERO}, {vr(t)}', f'v_mov_b32 {vr(t + 1)}, 0', f'ds_write_b32 {vr(t)}, {vr(t + 1)}')
        A(f'v_lshlrev_b32 {vr(t)}, 2, v0', f'v_add_u32 {vr(t)}, {ONES}, {vr(t)}', f'v_mov_b32 {vr(t + 1)}, 0x3f803f80', f'ds_write_b32 {vr(t)}, {vr(t + 1)}')
        A(f'v_min_u32 {vr(t + 2)}, 31, {vLane}', f'v_lshlrev_b32 {vr(t + 2)}, 2, {vr(t + 2)}', f'v_add_u32 {vr(t + 2)}, {ONES + 1024}, {vr(t + 2)}', f'ds_write_b32 {vr(t + 2)}, {vr(t + 1)}')
        A('s_mul_i32 s76, s59, 18432', f's_add_u32 s76, s76, {LW2}')
        A.label(le)

    def dma_t2(self, lo, hi, pace):
        A = self.A
        if 'o' in self.skip:
            return
        for grp in range(lo, hi):
            for i in range(3):
                A('s_mov_b32 m0, s78')
                A(f'buffer_load_dwordx4 {vr(RA + i)}, {WA_SRD}, s77 offen {self.wpol} lds')
                A('s_add_u32 s78, s78, 1024')
            A('s_add_u32 s77, s77, 36864')
            if pace:
                A(f's_waitcnt vmcnt({pace})')

    def dma_w13(self, lo, hi, pace):
        A = self.A
        if 'w' in self.skip:
            return
        for ks in range(lo, hi):
            A('s_mov_b32 m0, s78', 's_add_u32 s60, s78, 2048')
            A(f'buffer_load_dwordx4 {vr(HA)}, {WA_SRD}, s77 offen {self.wpol} lds')
            A('s_mov_b32 m0, s60', 's_add_u32 s78, s78, 4096')
            A(f'buffer_load_dwordx4 {vr(HA + 1)}, {W3_SRD}, s77 offen {self.wpol} lds')
            A(f's_add_u32 s77, s77, {32 * 9216}')
            if pace:
                A(f's_waitcnt vmcnt({pace})')

    def dma_w2(self, lo, hi, pace):
        A = self.A
        for i in range(lo, hi):
            A('s_mov_b32 m0, s76')
            A(f'buffer_load_dwordx4 {vr(HA + 2 + i)}, {W2_SRD}, s79 offen {self.wpol} lds')
            A('s_add_u32 s76, s76, 1024')
            if pace and i % 2:
                A(f's_waitcnt vmcnt({pace})')

    def helper(self):
        A = self.A
        A.label('L_help')
        if not self.hset:
            self.setup_consts()
            self.setup_roles()
        lf, le = self.lab('hf'), self.lab('he')
        A(f's_cmp_eq_u32 {sRole}, 0', f's_cbranch_scc0 {lf}')
        self.dma_t2(self.bo, self.eo, self.pace)
        A(f's_branch {le}')
        A.label(lf)
        A(f's_cmp_eq_u32 {sRole}, 1', f's_cbranch_scc0 {le}')
        if self.hset < 2:
            self.setup_w2()
        self.dma_w13(self.b13, self.e13, self.pace)
        self.dma_w2(0, self.e2, self.pace)
        A.label(le)
        chk, ok = self.lab('ev'), self.lab('evok')
        t = T0
        A('s_lshl_b32 s60, s59, 16', f's_add_u32 s60, s60, {QBUF + 4}', f'v_lshl_add_u32 {vr(t)}, {vLane}, 10, s60')
        A(f's_mov_b32 {sSpin}, {self.spin}')
        A.label(chk)
        A(f'buffer_load_dword {vr(t + 5)}, {vr(t)}, {WS_SRD}, 0 offen sc1', f'buffer_load_dword {vr(t + 7)}, {vr(t)}, {WS_SRD}, 0 offen offset:512 sc1', 's_waitcnt vmcnt(0)')
        A(f'v_xor_b32 {vr(t + 5)}, {sTag}, {vr(t + 5)}', f'v_xor_b32 {vr(t + 7)}, {sTag}, {vr(t + 7)}', f'v_or_b32 {vr(t + 5)}, {vr(t + 5)}, {vr(t + 7)}')
        A(f'v_cmp_ne_u32 vcc, 0, {vr(t + 5)}')
        self.spin_end(chk, ok)
        A.label(ok)
        self.stamp(3)
        if self.repf:
            A('s_barrier')
            self.prefill(again=True)
            A('s_waitcnt vmcnt(0)')
        if self.e1s == 2:
            lf1 = self.lab('f1')
            A(f's_lshl_b32 s60, {sG}, 4', f's_lshl_b32 s61, {sB}, 3', 's_add_u32 s60, s60, s61', f's_add_u32 s60, s60, {sS}', 's_lshl_b32 s60, s60, 7', f's_add_u32 s60, s60, {FLAG1}')
            A(f'v_mov_b32 {vr(t)}, {sTag}', f'v_mov_b32 {vr(t + 1)}, 0', 's_barrier', f's_cmp_eq_u32 {sW}, 2', f's_cbranch_scc0 {lf1}')
            if self.f1d:
                A(f's_sleep {self.f1d}')
            A('s_mov_b64 exec, 1', f'buffer_store_dword {vr(t)}, {vr(t + 1)}, {WS_SRD}, s60 offen sc1', 's_mov_b64 exec, -1')
            A.label(lf1)
        A('s_barrier')
        self.merge_stats(T0)
        A('s_lshl_b32 s60, s59, 5', 's_lshl_b64 exec, 1, s60')
        A(f'buffer_store_dwordx2 {vr(T0 + 10, 2)}, {vSad}, {WS_SRD}, 0 offen sc1')
        A('s_mov_b64 exec, -1', 's_barrier')
        self.stamp(4)
        for w in range(2):
            A(f'ds_read_b64 {vr(t + 2 * w, 2)}, {vCmbR} offset:{1024 * w}')
        A('s_waitcnt lgkmcnt(0)', f'v_pk_add_f32 {vr(t, 2)}, {vr(t, 2)}, {vr(t + 2, 2)}', f'v_cvt_pk_bf16_f32 {vr(t)}, {vr(t)}, {vr(t + 1)}')
        A(f'buffer_store_dword {vr(t)}, {vOad}, {WS_SRD}, 0 offen sc1')
        lf, le = self.lab('hf'), 'L_tail'
        A(f's_cmp_eq_u32 {sRole}, 0', f's_cbranch_scc0 {lf}')
        self.dma_t2(self.eo, 8, 0)
        A(f's_branch {le}')
        A.label(lf)
        A(f's_cmp_eq_u32 {sRole}, 1', f's_cbranch_scc0 {le}')
        self.dma_w13(self.e13, 18, 0)
        self.dma_w2(self.e2, 18, 0)
        A(f's_branch {le}')

    def merge_stats(self, t):
        A = self.A
        for w in range(2):
            A(f'ds_read_b64 {vr(t + 2 * w, 2)}, {vMstR} offset:{16 * w}')
        A('s_waitcnt lgkmcnt(0)')
        mx, ls = t + 10, t + 11
        A(f'v_max_f32 {vr(mx)}, {vr(t)}, {vr(t + 2)}')
        A(f'v_sub_f32 {vr(t)}, {vr(t)}, {vr(mx)}', f'v_sub_f32 {vr(t + 2)}, {vr(t + 2)}, {vr(mx)}')
        A(f'v_mul_f32 {vr(t)}, {sL2e}, {vr(t)}', f'v_mul_f32 {vr(t + 2)}, {sL2e}, {vr(t + 2)}')
        A(f'v_exp_f32 {vr(t)}, {vr(t)}', f'v_exp_f32 {vr(t + 2)}, {vr(t + 2)}')
        A(f'v_mul_f32 {vr(ls)}, {vr(t)}, {vr(t + 1)}', f'v_fmac_f32 {vr(ls)}, {vr(t + 2)}, {vr(t + 3)}')

    def tile_start(self, par):
        A, NS, NH = self.A, self.NS, self.NH
        ls, ln = self.lab('ts'), self.lab('tn')
        npf = 1024 - 16 * NS - NH // 2
        A(f's_cmp_lt_u32 {sIt}, {NS}', f's_cbranch_scc1 {ls}')
        A(f'v_readfirstlane_b32 s48, {vC}', f's_cmp_ge_u32 s48, {npf + NH}', f's_cbranch_scc1 L_drain{par}')
        if NH:
            lh = self.lab('th')
            A(f's_mov_b64 {mC}, {mB}', f's_mov_b64 {mB}, {mA}', f's_cmp_ge_u32 s48, {npf}', f's_cbranch_scc1 {lh}')
        A('s_lshl_b32 s48, s48, 13', f's_add_u32 {sT}, {sPool}, s48')
        if NH:
            A(f's_mov_b32 {sT2}, {sT}')
        A(f's_branch {ln}')
        if NH:
            A.label(lh)
            A(f's_add_u32 s48, s48, {npf}', 's_lshl_b32 s48, s48, 12', f's_add_u32 {sT}, {sPool}, s48', f's_mov_b32 {sT2}, 0x10000000')
            A('s_mov_b32 s60, 0xcccccccc', 's_mov_b32 s61, 0xcccccccc', f's_branch {ln}')
        A.label(ls)
        A(f's_add_u32 {sT}, {sT}, 131072')
        if NH:
            A(f's_mov_b32 {sT2}, {sT}')
        A.label(ln)
        A(f's_add_u32 {sIt}, {sIt}, 1')

    def claim(self):
        A = self.A
        ln = self.lab('tn')
        A(f's_cmp_lt_u32 {sIt}, {self.NS}', f's_cbranch_scc1 {ln}')
        A(f'v_mov_b32 {vC}, 1', 's_mov_b64 exec, 1')
        A(f'buffer_atomic_add {vC}, {vCa}, {WS_SRD}, 0 offen sc0')
        A('s_mov_b64 exec, -1')
        A.label(ln)

    def stream(self):
        A, W, L = self.A, self.W, self.L
        qp = T0 + 48
        A(f's_cmp_eq_u32 {sH}, 0', 's_cbranch_scc0 L_help')
        A(f'ds_read_b128 {vr(qp, 4)}, {vQr}', 's_waitcnt lgkmcnt(0)')
        for k in range(4):
            A(f'v_cndmask_b32 {vr(BQ + k)}, {vr(qp + k)}, 0, {mPar}', f'v_cndmask_b32 {vr(BQ + 4 + k)}, 0, {vr(qp + k)}, {mPar}')
        if self.NH:
            A(f's_mov_b64 {mA}, 0', f's_mov_b64 {mB}, 0', f's_mov_b64 {mC}, 0', f'v_mov_b32 {vNI}, 0xff800000')
        if self.stage:
            A(f's_lshl_b32 s48, {sW}, 14', f's_add_u32 s48, s48, {LW2}', f'v_add_u32 {vr(T0 + 60)}, s48, {vV0}')
        if self.deep:
            assert L == 7
            for k in range(1, 9):
                self.more(1, self.cnt, False)
                self.consume(2 * k - 2)
                self.consume(2 * k - 1)
            self.more(1, self.cnt, False)
            self.consume(16)
            A(f's_mov_b32 {sIt}, 6')
            if self.stage:
                A('s_waitcnt lgkmcnt(0)')
        else:
            self.more(1, self.cnt, False)
            for n in range(0, 8 - L):
                self.consume(n)
            A(f's_mov_b32 {sIt}, 2')
        A.label('L_loop')
        if self.lst:
            for k, it in ((6, 6), (7, 10), (8, 30), (9, 50)):
                l = self.lab('ls')
                A(f's_cmp_eq_u32 {sIt}, {it}', f's_cbranch_scc0 {l}', 's_memrealtime s[100:101]', 's_waitcnt lgkmcnt(0)', f's_mov_b32 s{80 + k}, s100')
                A.label(l)
        l2 = self.lab('it')
        A(f's_cmp_eq_u32 {sIt}, {self.late_pf}', f's_cbranch_scc0 {l2}')
        A(f'global_load_dword v255, {vPf}, {sPC}')
        A.label(l2)
        for n in range(24, 32):
            A(f's_waitcnt vmcnt({min(self.cnt, 8) if n % 4 == 0 else self.cnt})')
            if n % 4 == 0:
                self.tile_start((n // 4) & 1)
            if n % 4 == 2:
                self.claim()
            self.piece(n, track=False)
            if not self.nocomp:
                self.consume(n - L)
        A('s_branch L_loop')
        for par in range(2):
            A.label(f'L_drain{par}')
            self.stamp(3)
            if self.e1s == 2:
                A('s_barrier')
            n0 = 24 + 4 * par
            for n in range(n0 - L, n0 - 2):
                if n > n0 - W:
                    A(f's_waitcnt vmcnt({4 * (n0 - 1 - n)})')
                self.consume(n, mB if n < n0 - 4 else mA)
            t = T0
            for c in ('quad_perm:[1,0,3,2]', 'quad_perm:[2,3,0,1]', 'row_ror:8'):
                A(f'v_add_f32_dpp {vL}, {vL}, {vL} ' + dpp(c))
            A(f'v_mov_b32 {vr(t)}, {vL}', f'v_permlane16_swap_b32 {vL}, {vr(t)}', f'v_add_f32 {vL}, {vL}, {vr(t)}')
            A(f'v_mov_b32 {vr(t)}, {vL}', f'v_permlane32_swap_b32 {vL}, {vr(t)}', f'v_add_f32 {vL}, {vL}, {vr(t)}')
            A('s_mov_b64 exec, 0x11', f'ds_write_b64 {vMstW}, v[18:19]', 's_mov_b64 exec, -1', 's_waitcnt lgkmcnt(0)', 's_barrier')
            self.merge_stats(t)
            A(f'v_rcp_f32 {vr(t + 8)}, {vr(t + 11)}', f's_cmp_eq_u32 {sW}, 0', 's_cselect_b64 vcc, -1, 0')
            A(f'v_cndmask_b32 {vr(t)}, {vr(t + 2)}, {vr(t)}, vcc', f'v_mul_f32 {vr(t + 8)}, {vr(t + 8)}, {vr(t)}')
            A('s_waitcnt vmcnt(4)')
            self.consume(n0 - 2)
            A('s_waitcnt vmcnt(0)')
            self.consume(n0 - 1)
            if par == 0:
                A('s_branch L_join')
        A.label('L_join')
        self.stamp(4)
        for r in range(4):
            A(f'v_mul_f32 {vr(ACC + r)}, {vr(ACC + r)}, {vr(T0 + 8)}')
        A(f'ds_write_b128 {vCmbW}, {vr(ACC, 4)}', 's_waitcnt lgkmcnt(0)', 's_barrier')

    def omega(self, st, mx, e):
        return [f'v_max_f32_dpp {vr(mx)}, {vr(st)}, {vr(st)} ' + dpp('quad_perm:[1,0,3,2]'),
                f'v_max_f32_dpp {vr(mx)}, {vr(mx)}, {vr(mx)} ' + dpp('quad_perm:[2,3,0,1]'),
                f'v_max_f32_dpp {vr(mx)}, {vr(mx)}, {vr(mx)} ' + dpp('row_half_mirror'),
                f'v_sub_f32 {vr(e)}, {vr(st)}, {vr(mx)}', f'v_mul_f32 {vr(e)}, {sL2e}, {vr(e)}', f'v_exp_f32 {vr(e)}, {vr(e)}',
                f'v_mul_f32 {vr(e)}, {vr(e)}, {vr(st + 1)}',
                f'v_add_f32_dpp {vr(mx)}, {vr(e)}, {vr(e)} ' + dpp('quad_perm:[1,0,3,2]'),
                f'v_add_f32_dpp {vr(mx)}, {vr(mx)}, {vr(mx)} ' + dpp('quad_perm:[2,3,0,1]'),
                f'v_add_f32_dpp {vr(mx)}, {vr(mx)}, {vr(mx)} ' + dpp('row_half_mirror'),
                f'v_rcp_f32 {vr(mx)}, {vr(mx)}', f'v_mul_f32 {vr(e)}, {vr(e)}, {vr(mx)}']

    def role_t2(self):
        A = self.A
        a, st = T0, T0 + 16

        def loads(stats=True):
            for ks in range(4):
                A(f'buffer_load_dwordx4 {vr(a + 4 * ks, 4)}, {vr(RA + 4)}, {WS_SRD}, 0 offen offset:{64 * ks} sc1')
            if stats:
                A(f'buffer_load_dwordx2 {vr(st, 2)}, {vr(RA + 5)}, {WS_SRD}, 0 offen sc1')
        xr = T0 + 60
        A(f'buffer_load_dwordx2 {vr(xr, 2)}, {vr(RA + 12)}, {X_SRD}, 0 offen')
        if self.e1s == 2:
            A(f'buffer_load_dword {vr(T0 + 76)}, {vr(RA + 19)}, {WS_SRD}, 0 offen sc1')
            A('s_waitcnt vmcnt(2)', 's_barrier')
        elif self.e1s:
            A(f'buffer_load_dwordx2 {vr(st, 2)}, {vr(RA + 5)}, {WS_SRD}, 0 offen sc1')
            if self.eo < 8:
                A('s_waitcnt vmcnt(2)', 's_barrier')
        else:
            loads()
            A('s_waitcnt vmcnt(6)', 's_barrier')
        for ks in range(4):
            for tau in range(3):
                for u in range(2):
                    A(f'ds_read_b64_tr_b16 {ar(128 + 4 * (3 * ks + tau) + 2 * u, 2)}, {vr(RA + 3)} offset:{ks * 3072 + u * 1536 + tau * 32}')
        def arrive():
            A(f'v_mov_b32 {vr(T0 + 38)}, {CTR}', f'v_mov_b32 {vr(T0 + 39)}, 1', 's_waitcnt lgkmcnt(0)', 's_mov_b64 exec, 1')
            A(f'ds_add_rtn_u32 {vr(T0 + 39)}, {vr(T0 + 38)}, {vr(T0 + 39)}', 's_mov_b64 exec, -1')

        def announce(then=None):
            lf = self.lab('f2')
            A('s_waitcnt lgkmcnt(0)', f'v_readfirstlane_b32 s60, {vr(T0 + 39)}', f'v_mov_b32 {vr(T0 + 38)}, {sTag}', 's_cmp_eq_u32 s60, 3', f's_cbranch_scc0 {lf}')
            A('s_mov_b64 exec, 0xff', f'buffer_store_dword {vr(T0 + 38)}, {vr(RA + 18)}, {WS_SRD}, 0 offen sc1', 's_mov_b64 exec, -1')
            if then:
                A(f's_mov_b32 {sSpin}, {self.spin}', 's_waitcnt vmcnt(1)', f's_branch {then}')
            A.label(lf)
        e1body = self.lab('e1b')
        if self.e1s == 2:
            ok = self.lab('e0ok')
            self.poll(lambda k: A(f'buffer_load_dword {vr(T0 + 76 + k)}, {vr(RA + 19)}, {WS_SRD}, 0 offen sc1'),
                      lambda k: A(f'v_cmp_ne_u32 vcc, {sTag}, {vr(T0 + 76 + k)}', f's_cbranch_vccz {ok}'), 1, ok, first_issued=True, sleep=self.ps[0])
            A.label(ok)
            if self.e1d:
                A(f's_sleep {self.e1d}')
            loads()
            if self.f2e:
                arrive()
                if self.f2d:
                    A(f's_sleep {self.f2d}')
                announce(e1body)
        elif self.e1s:
            ok = self.lab('e0ok')
            sr = lambda k: st if k == 0 else T0 + 76 + 2 * k

            def chk0(k):
                A(f'v_max_u32 {vr(T0 + 18)}, {vr(sr(k))}, {vr(sr(k) + 1)}', f'v_cmp_eq_u32 vcc, -1, {vr(T0 + 18)}')
                if k:
                    l = self.lab('e0')
                    A(f's_cbranch_vccnz {l}', f'v_mov_b32 {vr(T0 + 84)}, {vr(sr(k))}', f'v_mov_b32 {vr(T0 + 85)}, {vr(sr(k) + 1)}', f's_branch {ok}m')
                    A.label(l)
                else:
                    A(f's_cbranch_vccz {ok}0')
            self.poll(lambda k: A(f'buffer_load_dwordx2 {vr(sr(k), 2)}, {vr(RA + 5)}, {WS_SRD}, 0 offen sc1'), chk0, 1, ok + '0', first_issued=True, sleep=self.ps[0])
            A.label(ok + '0')
            A(f'v_mov_b32 {vr(T0 + 84)}, {vr(st)}', f'v_mov_b32 {vr(T0 + 85)}, {vr(st + 1)}')
            A.label(ok + 'm')
            st = T0 + 84
            for y in self.omega(st, T0 + 36, T0 + 37):
                A(y)
            st = T0 + 16
            if self.e1d:
                A(f's_sleep {self.e1d}')
            loads(False)
            if self.f2e:
                arrive()
                if self.f2d:
                    A(f's_sleep {self.f2d}')
                announce(e1body)
        chk, ok = self.lab('e1'), self.lab('e1ok')
        A(f's_mov_b32 {sSpin}, {self.spin}')
        A.label(chk)
        A('s_waitcnt vmcnt(0)')
        A.label(e1body)
        m = T0 + 18
        for k in range(6):
            last = a + 3 * k if (self.e1s == 1 and k == 5) else None
            A(f'v_max3_u32 {vr(m + k)}, {vr(a + 3 * k)}, {vr(last or a + 3 * k + 1)}, {vr(last or a + 3 * k + 2)}')
        A(f'v_max3_u32 {vr(m)}, {vr(m)}, {vr(m + 1)}, {vr(m + 2)}', f'v_max3_u32 {vr(m + 3)}, {vr(m + 3)}, {vr(m + 4)}, {vr(m + 5)}', f'v_max_u32 {vr(m)}, {vr(m)}, {vr(m + 3)}')
        A(f'v_cmp_eq_u32 vcc, -1, {vr(m)}')
        A(f's_cbranch_vccz {ok}', f's_sub_u32 {sSpin}, {sSpin}, 1', f's_cbranch_scc1 {ok}')
        if self.sl1:
            A(f's_sleep {self.sl1}')
        if self.mrt:
            A('s_mov_b64 exec, vcc')
        loads(self.e1s != 1)
        if self.mrt:
            A('s_mov_b64 exec, -1')
        A(f's_branch {chk}')
        A.label(ok)
        self.stamp(6)
        if self.cntdbg:
            A(f's_sub_u32 s81, {self.spin}, {sSpin}')
        if self.f2e:
            A('s_waitcnt lgkmcnt(0)')
        else:
            arrive()
        D = T0 + 24
        mf = []
        for ks in range(4):
            for tau in range(3):
                c = '0' if ks == 0 else vr(D + 4 * tau, 4)
                mf.append(f'v_mfma_f32_16x16x32_bf16 {vr(D + 4 * tau, 4)}, {vr(a + 4 * ks, 4)}, {ar(128 + 4 * (3 * ks + tau), 4)}, {c}')
        e = T0 + 37
        va = [''] * 12 if self.e1s == 1 else self.omega(st, T0 + 36, e)
        for k, (x, y) in enumerate(zip(mf, va)):
            A(x, y)
            if k == 4 and not self.f2e:
                announce()
        S = T0 + 40
        for r in range(4):
            for tau in range(3):
                op = 'v_mul_f32_dpp' if r == 0 else 'v_fmac_f32_dpp'
                A(f'{op} {vr(S + tau)}, {vr(e)}, {vr(D + 4 * tau + r)} ' + dpp(f'row_newbcast:{r}'))
        A(f'v_mov_b32 {vr(S + 3)}, {vr(S + 2)}', f'v_permlane16_swap_b32 {vr(S)}, {vr(S + 1)}', f'v_permlane16_swap_b32 {vr(S + 2)}, {vr(S + 3)}')
        A(f'v_add_f32 {vr(S)}, {vr(S)}, {vr(S + 1)}', f'v_add_f32 {vr(S + 2)}, {vr(S + 2)}, {vr(S + 3)}')
        A(f'ds_write_b32 {vr(RA + 6)}, {vr(S)}', f'ds_write_b32 {vr(RA + 7)}, {vr(S + 2)}', 's_waitcnt lgkmcnt(0)', 's_barrier')
        l1 = self.lab('ap')
        A(f's_cmp_eq_u32 {sH}, 0', f's_cbranch_scc0 {l1}')
        A(f'ds_read2_b32 {vr(S, 2)}, {vr(RA + 8)} offset0:0 offset1:96', f'ds_read_b32 {vr(S + 2)}, {vr(RA + 8)} offset:768', f'ds_read_b32 {vr(S + 3)}, {vr(RA + 8)} offset:1152')
        A('s_mov_b32 exec_hi, 0xffff', 's_waitcnt lgkmcnt(0)')
        A(f'v_add_f32 {vr(S)}, {vr(S)}, {vr(S + 1)}', f'v_add_f32 {vr(S + 2)}, {vr(S + 2)}, {vr(S + 3)}', f'v_add_f32 {vr(S)}, {vr(S)}, {vr(S + 2)}')
        A(f'buffer_store_dword {vr(S)}, {vr(RA + 9)}, {WS_SRD}, 0 offen sc1')
        A('s_mov_b64 exec, -1')
        A.label(l1)
        self.stamp(7)
        A(f's_cmp_lt_u32 {sN}, 9', 's_cbranch_scc0 L_fin')
        lw, lj = self.lab('fw'), self.lab('fj')
        q = T0 + 64
        for k in range(4):
            A(f'v_mov_b32 {vr(q + 8 + k)}, 0')
        A(f's_cmp_eq_u32 {sW}, 3', f's_cbranch_scc0 {lw}')
        ok = self.lab('f3ok')
        fa, ft = T0 + 44, T0 + 45
        fl = lambda k: T0 + 80 + 4 * k
        A(f's_lshl_b32 s60, {sS}, 15', f's_add_u32 s60, s60, {FLAG3}', f'v_lshl_add_u32 {vr(fa)}, {vLane}, 7, s60')
        for k in range(self.pd):
            A(f'v_mov_b32 {vr(fl(k) + 2)}, {sTag}')
        A('s_mov_b32 s60, 8192', 's_mov_b32 s61, 16384')

        def iss3(k):
            A(f'buffer_load_dword {vr(fl(k))}, {vr(fa)}, {WS_SRD}, 0 offen sc1', f'buffer_load_dword {vr(fl(k) + 1)}, {vr(fa)}, {WS_SRD}, s60 offen sc1')
            A('s_mov_b64 exec, 0xffff', f'buffer_load_dword {vr(fl(k) + 2)}, {vr(fa)}, {WS_SRD}, s61 offen sc1', 's_mov_b64 exec, -1')

        def chk3(k):
            A(f'v_xor_b32 {vr(ft)}, {sTag}, {vr(fl(k))}', f'v_xor_b32 {vr(ft + 1)}, {sTag}, {vr(fl(k) + 1)}', f'v_xor_b32 {vr(ft + 2)}, {sTag}, {vr(fl(k) + 2)}')
            A(f'v_or3_b32 {vr(ft)}, {vr(ft)}, {vr(ft + 1)}, {vr(ft + 2)}', f'v_cmp_ne_u32 vcc, 0, {vr(ft)}', f's_cbranch_vccz {ok}')
        self.poll(iss3, chk3, 3, ok, sleep=self.ps[2])
        A.label(ok)
        A(f's_branch {lj}')
        A.label(lw)
        A(f's_cmp_eq_u32 {sW}, 0', f's_cbranch_scc0 {lj}')
        p, hh = T0 + 44, T0 + 52
        chk, ok = self.lab('f2c'), self.lab('f2ok')
        A(f's_mov_b32 {sSpin}, {self.spin}')
        A.label(chk)
        A(f'buffer_load_dword {vr(p)}, {vr(RA + 13)}, {WS_SRD}, 0 offen sc1', 's_waitcnt vmcnt(0)', f'v_cmp_ne_u32 vcc, {sTag}, {vr(p)}')
        self.spin_end(chk, ok)
        A.label(ok)
        chk, ok = self.lab('e2'), self.lab('e2ok')
        A(f's_mov_b32 {sSpin}, {self.spin}')
        A.label(chk)
        A(f'buffer_load_dwordx4 {vr(p, 4)}, {vr(RA + 10)}, {WS_SRD}, 0 offen sc1', 's_waitcnt vmcnt(0)')
        for c in ('quad_perm:[1,0,3,2]', 'quad_perm:[2,3,0,1]', 'row_half_mirror'):
            for k in range(4):
                A(f'v_add_f32_dpp {vr(p + k)}, {vr(p + k)}, {vr(p + k)} ' + dpp(c))
        A(f'v_add_f32 {vr(p + 4)}, {vr(p)}, {vr(p + 1)}', f'v_add_f32 {vr(p + 5)}, {vr(p + 2)}, {vr(p + 3)}', f'v_cmp_u_f32 vcc, {vr(p + 4)}, {vr(p + 5)}')
        self.spin_end(chk, ok)
        A.label(ok)
        A(f'v_cvt_pk_bf16_f32 {vr(p)}, {vr(p)}, {vr(p + 1)}', f'v_cvt_pk_bf16_f32 {vr(p + 2)}, {vr(p + 2)}, {vr(p + 3)}')
        for k in range(2):
            A(f'v_lshlrev_b32 {vr(hh + 2 * k)}, 16, {vr(p + 2 * k)}', f'v_and_b32 {vr(hh + 2 * k + 1)}, 0xffff0000, {vr(p + 2 * k)}')
            A(f'v_lshlrev_b32 {vr(p + 4)}, 16, {vr(xr + k)}', f'v_and_b32 {vr(p + 5)}, 0xffff0000, {vr(xr + k)}')
            A(f'v_add_f32 {vr(hh + 2 * k)}, {vr(hh + 2 * k)}, {vr(p + 4)}', f'v_add_f32 {vr(hh + 2 * k + 1)}, {vr(hh + 2 * k + 1)}, {vr(p + 5)}')
            A(f'v_cvt_pk_bf16_f32 {vr(p + 4)}, {vr(hh + 2 * k)}, {vr(hh + 2 * k + 1)}')
            A(f'v_lshlrev_b32 {vr(hh + 2 * k)}, 16, {vr(p + 4)}', f'v_and_b32 {vr(hh + 2 * k + 1)}, 0xffff0000, {vr(p + 4)}')
        A(f'ds_write_b128 {vr(RA + 14)}, {vr(hh, 4)}', f'v_lshlrev_b32 {vr(p)}, 2, {vr(self.fields[3])}', f'v_add_u32 {vr(p)}, {HRES}, {vr(p)}')
        A('s_waitcnt lgkmcnt(0)', f'ds_read_b32 {vr(hh)}, {vr(p)}', 's_waitcnt lgkmcnt(0)')
        A.label(lj)
        A('s_mov_b32 s60, 2048', 's_mov_b32 s61, 4096', f's_mov_b32 {sSpin}, {self.spin}', 's_barrier')
        self.stamp(8)
        chk, ok = self.lab('e3'), self.lab('e3ok')
        A.label(chk)
        A(f'buffer_load_dwordx4 {vr(q, 4)}, {vr(RA + 11)}, {WS_SRD}, 0 offen sc1')
        A(f'buffer_load_dwordx4 {vr(q + 4, 4)}, {vr(RA + 11)}, {WS_SRD}, s60 offen sc1')
        A('s_mov_b64 exec, 0xffff')
        A(f'buffer_load_dwordx4 {vr(q + 8, 4)}, {vr(RA + 11)}, {WS_SRD}, s61 offen sc1')
        A('s_mov_b64 exec, -1', 's_waitcnt vmcnt(1)')
        A(f'v_pk_add_f32 {vr(q, 2)}, {vr(q, 2)}, {vr(q + 4, 2)}', f'v_pk_add_f32 {vr(q + 2, 2)}, {vr(q + 2, 2)}, {vr(q + 6, 2)}')
        A('s_waitcnt vmcnt(0)')
        A(f'v_pk_add_f32 {vr(q, 2)}, {vr(q, 2)}, {vr(q + 8, 2)}', f'v_pk_add_f32 {vr(q + 2, 2)}, {vr(q + 2, 2)}, {vr(q + 10, 2)}')
        A(f'v_pk_add_f32 {vr(q + 4, 2)}, {vr(q, 2)}, {vr(q + 2, 2)}', f'v_cmp_u_f32 vcc, {vr(q + 4)}, {vr(q + 5)}')
        self.spin_end(chk, ok)
        A.label(ok)
        self.stamp(9)
        for c in ('row_ror:4', 'row_ror:8'):
            for k in range(4):
                A(f'v_add_f32_dpp {vr(q + k)}, {vr(q + k)}, {vr(q + k)} ' + dpp(c))
        A('s_mov_b32 exec_lo, 0xf000f', 's_mov_b32 exec_hi, 0xf000f', f'ds_write_b128 {vr(RA + 15)}, {vr(q, 4)}', 's_mov_b64 exec, -1', 's_waitcnt lgkmcnt(0)', 's_barrier')
        A(f's_cmp_eq_u32 {sW}, 0', 's_cbranch_scc0 L_fin')
        A(f'ds_read2_b32 {vr(q, 2)}, {vr(RA + 16)} offset0:0 offset1:16', f'ds_read2_b32 {vr(q + 2, 2)}, {vr(RA + 16)} offset0:32 offset1:48', 's_waitcnt lgkmcnt(0)')
        A(f'v_pk_add_f32 {vr(q, 2)}, {vr(q, 2)}, {vr(q + 2, 2)}', f'v_add_f32 {vr(q)}, {vr(q)}, {vr(q + 1)}')
        A(f'v_mov_b32 {vr(q + 1)}, {vr(q)}', f'v_permlane16_swap_b32 {vr(q)}, {vr(q + 1)}', f'v_add_f32 {vr(q)}, {vr(q)}, {vr(q + 1)}')
        A(f'v_mov_b32 {vr(q + 1)}, {vr(q)}', f'v_permlane32_swap_b32 {vr(q)}, {vr(q + 1)}', f'v_add_f32 {vr(q)}, {vr(q)}, {vr(q + 1)}')
        A(f'v_cvt_pk_bf16_f32 {vr(q)}, {vr(q)}, {vr(q)}', f'v_lshlrev_b32 {vr(q)}, 16, {vr(q)}', f'v_add_f32 {vr(q)}, {vr(q)}, {vr(hh)}')
        A(f'v_mov_b32_dpp {vr(q + 1)}, {vr(q)} ' + dpp('quad_perm:[1,1,3,3]'), f'v_cvt_pk_bf16_f32 {vr(q)}, {vr(q)}, {vr(q + 1)}')
        A('s_mov_b64 exec, 0x5555', f'buffer_store_dword {vr(q)}, {vr(RA + 17)}, {OUT_SRD}, 0 offen {self.osc}', 's_mov_b64 exec, 1')
        A(f's_or_b32 s60, {sGF}, {sN}', f's_or_b32 s60, s60, {sW}', 's_cmp_eq_u32 s60, 0', 's_cbranch_scc0 L_fin')
        A(f'v_mov_b32 {vr(q + 2)}, {sTag}', f'v_mov_b32 {vr(q + 3)}, 0')
        A(f'buffer_store_dword {vr(q + 2)}, {vr(q + 3)}, {WS_SRD}, 0 offen sc1')
        A('s_branch L_fin')

    def flag3(self, when):
        A = self.A
        if self.f3 == when:
            l = self.lab('fl')
            A(f's_cmp_eq_u32 {sW}, 3', f's_cbranch_scc0 {l}', f's_lshl_b32 s60, {sGF}, 7', f's_add_u32 s60, s60, {FLAG3}')
            A(f'v_mov_b32 {vr(T0 + 94)}, {sTag}', f'v_lshlrev_b32 {vr(T0 + 95)}, 15, {vLane}', f's_mov_b64 exec, {(1 << self.rep3) - 1}')
            A(f'buffer_store_dword {vr(T0 + 94)}, {vr(T0 + 95)}, {WS_SRD}, s60 offen sc1', 's_mov_b64 exec, -1')
            A.label(l)
            if when == 2:
                A('s_nop 7')

    def role_ffn(self):
        A = self.A
        for G in range(1, 8):
            A(f's_mov_b32 s{55 + G}, {4608 * G}')
        p, e = T0, T0 + 32

        def gload(G):
            so = '0' if G == 0 else f's{55 + G}'
            A(f'buffer_load_dwordx4 {vr(p + 4 * G, 4)}, {vr(RA + 16)}, {WS_SRD}, {so} offen sc1', f'buffer_load_dword {vr(e + G)}, {vr(RA + 17)}, {WS_SRD}, {so} offen sc1')
        fl = T0 + 46
        A(f'buffer_load_dword {vr(fl)}, {vr(RA + 21)}, {WS_SRD}, 0 offen sc1')
        x = T0 + 80
        A(f'v_lshlrev_b32 {vr(x)}, 16, {vr(vXo)}', f'v_and_b32 {vr(x + 1)}, 0xffff0000, {vr(vXo)}')
        A(f'v_lshlrev_b32 {vr(x + 2)}, 16, {vr(vXo + 1)}', f'v_and_b32 {vr(x + 3)}, 0xffff0000, {vr(vXo + 1)}')
        A(f'v_lshlrev_b32 {vr(x + 4)}, 16, {vr(vXo + 2)}')
        def w13_reads(lo, hi):
            for ks in range(lo, hi):
                for u in range(2):
                    base = RA + 10 + (ks >= 9)
                    A(f'ds_read_b64_tr_b16 {ar(128 + 4 * ks + 2 * u, 2)}, {vr(base)} offset:{(ks % 9) * 4096 + u * 256}')
        w13_reads(0, self.e13)
        A('s_waitcnt vmcnt(1)', 's_barrier')
        self.stamp(6)
        w13_reads(self.e13, 18)
        if self.pk:
            for tau in range(9):
                for u in range(2):
                    A(f'ds_read_b64_tr_b16 {ar(200 + 4 * tau + 2 * u, 2)}, {vr(RA + 12 + tau % 4)} offset:{(tau // 4) * 128 + u * 4608}')
        allg, sweep, direct = self.lab('f2all'), self.lab('sweep'), self.lab('direct')
        A('s_mov_b32 s70, 0x01010101', 's_mov_b32 s71, 0x01010101')
        fr = lambda k: fl if k == 0 else T0 + 88 + k

        def chk2(k):
            again = self.lab('f2a')
            A(f'v_cmp_eq_u32 vcc, {sTag}, {vr(fr(k))}', 's_lshr_b64 s[92:93], vcc, 4', 's_and_b64 vcc, vcc, s[92:93]', 's_lshr_b64 s[92:93], vcc, 2', 's_and_b64 vcc, vcc, s[92:93]')
            A('s_lshr_b64 s[92:93], vcc, 1', 's_and_b64 vcc, vcc, s[92:93]', 's_and_b64 vcc, vcc, s[70:71]', f's_cbranch_scc0 {again}', 's_andn2_b64 s[70:71], s[70:71], vcc')
            for G in range(8):
                sk = self.lab('g')
                A(f's_bitcmp1_b64 vcc, {8 * G}', f's_cbranch_scc0 {sk}')
                gload(G)
                A.label(sk)
            A('s_cmp_eq_u64 s[70:71], 0', f's_cbranch_scc1 {allg}')
            A.label(again)
            if self.dir2:
                A('s_bcnt1_i32_b64 s63, s[70:71]', f's_cmp_le_u32 s63, {self.dir2}', f's_cbranch_scc1 {direct}')
        self.poll(lambda k: A(f'buffer_load_dword {vr(fr(k))}, {vr(RA + 21)}, {WS_SRD}, 0 offen sc1'), chk2, 1, allg, timeout=sweep, first_issued=True, sleep=self.ps[1])
        chk, ok = self.lab('e2'), self.lab('e2ok')
        if self.dir2:
            A.label(direct)
            A(f's_mov_b32 {sSpin}, {self.spin}')
            A.label(direct + 'r')
            if self.dsl:
                A(f's_sleep {self.dsl}')
            for G in range(8):
                sk = self.lab('g')
                A(f's_bitcmp1_b64 s[70:71], {8 * G}', f's_cbranch_scc0 {sk}')
                gload(G)
                A.label(sk)
            A(f's_branch {chk}')
        A.label(allg)
        A(f's_mov_b32 {sSpin}, {self.spin}')
        A.label(chk)
        h = T0 + 48
        A('s_waitcnt vmcnt(0)')
        for G in range(1, 8):
            src = p if G == 1 else h
            A(f'v_pk_add_f32 {vr(h, 2)}, {vr(src, 2)}, {vr(p + 4 * G, 2)}', f'v_pk_add_f32 {vr(h + 2, 2)}, {vr(src + 2, 2)}, {vr(p + 4 * G + 2, 2)}')
            if G % 2:
                A(f'v_pk_add_f32 {vr(e + 8, 2)}, {vr(e + G - 1, 2)}, ' + ('0' if G == 1 else vr(e + 8, 2)) if G == 1 else f'v_pk_add_f32 {vr(e + 8, 2)}, {vr(e + G - 1, 2)}, {vr(e + 8, 2)}')
        A(f'v_pk_add_f32 {vr(e + 10, 2)}, {vr(h, 2)}, {vr(h + 2, 2)}', f'v_add_f32 {vr(h + 4)}, {vr(e + 8)}, {vr(e + 9)}', f'v_add_f32 {vr(e + 10)}, {vr(e + 10)}, {vr(e + 11)}')
        A(f'v_cmp_u_f32 vcc, {vr(h + 4)}, {vr(e + 10)}')
        A(f's_cbranch_vccz {ok}', f's_sub_u32 {sSpin}, {sSpin}, 1', f's_cbranch_scc1 {ok}')
        if self.dir2:
            A(f's_and_b32 s63, {sSpin}, 15', 's_cmp_eq_u32 s63, 0', f's_cbranch_scc1 {sweep}', 's_cmp_eq_u64 s[70:71], 0', f's_cbranch_scc0 {direct}r')
        A.label(sweep)
        A(f's_and_b32 {sSpin}, {sSpin}, 0x1ffff')
        for G in range(8):
            gload(G)
        A(f's_branch {chk}')
        A.label(ok)
        self.stamp(7)
        self.flag3(4)
        A(f'v_cvt_pk_bf16_f32 {vr(h + 1)}, {vr(h)}, {vr(h + 1)}', f'v_cvt_pk_bf16_f32 {vr(h + 3)}, {vr(h + 2)}, {vr(h + 3)}')
        A(f'v_lshlrev_b32 {vr(h)}, 16, {vr(h + 1)}', f'v_and_b32 {vr(h + 1)}, 0xffff0000, {vr(h + 1)}', f'v_cvt_pk_bf16_f32 {vr(h + 4)}, {vr(h + 4)}, {vr(h + 4)}')
        A(f'v_lshlrev_b32 {vr(h + 2)}, 16, {vr(h + 3)}', f'v_and_b32 {vr(h + 3)}, 0xffff0000, {vr(h + 3)}', f'v_lshlrev_b32 {vr(h + 4)}, 16, {vr(h + 4)}')
        A(f'v_pk_add_f32 {vr(h, 2)}, {vr(h, 2)}, {vr(x, 2)}', f'v_pk_add_f32 {vr(h + 2, 2)}, {vr(h + 2, 2)}, {vr(x + 2, 2)}', f'v_add_f32 {vr(h + 4)}, {vr(h + 4)}, {vr(x + 4)}')
        A(f'v_cvt_pk_bf16_f32 {vr(h + 1)}, {vr(h)}, {vr(h + 1)}', f'v_cvt_pk_bf16_f32 {vr(h + 3)}, {vr(h + 2)}, {vr(h + 3)}', f'v_cvt_pk_bf16_f32 {vr(h + 4)}, {vr(h + 4)}, {vr(h + 4)}')
        tmp = T0 + 56
        if self.lnf:
            A(f'v_mov_b32 {vr(tmp + 10)}, {vr(h + 1)}', f'v_mov_b32 {vr(tmp + 11)}, {vr(h + 3)}')
            A(f'ds_write_b64 {vHNo}, {vr(tmp + 10, 2)}', f'ds_write_b16 {vHNe}, {vr(h + 4)}')
            self.flag3(5)
        A(f'v_lshlrev_b32 {vr(h)}, 16, {vr(h + 1)}', f'v_and_b32 {vr(h + 1)}, 0xffff0000, {vr(h + 1)}')
        A(f'v_lshlrev_b32 {vr(h + 2)}, 16, {vr(h + 3)}', f'v_and_b32 {vr(h + 3)}, 0xffff0000, {vr(h + 3)}', f'v_lshlrev_b32 {vr(h + 4)}, 16, {vr(h + 4)}')
        D = T0
        reads = [f'ds_read_b128 {ar(4 * ks, 4)}, {vr(RA + 22) if self.lnf else vHNa} offset:{64 * ks}' for ks in range(18)]
        for tau in range(0 if self.pk else 9):
            for u in range(2):
                reads.append(f'ds_read_b64_tr_b16 {ar(200 + 4 * tau + 2 * u, 2)}, {vr(RA + 12 + tau % 4)} offset:{(tau // 4) * 128 + u * 4608}')
        fill = []
        if self.lnf:
            self.ln_stage1(h, tmp)
            A('s_waitcnt lgkmcnt(0)', 's_barrier')
            a, b = tmp + 10, tmp + 14
            A(f'ds_read_b96 {vr(a, 3)}, {vr(RA + 23)}', f'ds_read_b96 {vr(b, 3)}, {vr(RA + 23)} offset:16')
            fill = self.ln_stage2(tmp)
        else:
            self.layernorm(h, tmp)
        if self.fst:
            self.stamp(1)
        self.flag3(1)
        issued = 0
        for _ in range(13):
            A(reads[issued]); issued += 1
        for ks in range(18):
            A(f's_waitcnt lgkmcnt({issued - ks - 1})')
            A(f'v_mfma_f32_16x16x32_bf16 {vr(D, 4)}, {ar(4 * ks, 4)}, {ar(128 + 4 * ks, 4)}, ' + ('0' if ks == 0 else vr(D, 4)))
            while issued < len(reads) and issued - (ks + 1) < 15:
                A(reads[issued]); issued += 1
            for _ in range(2):
                if fill:
                    A(fill.pop(0))
        while issued < len(reads):
            A(reads[issued]); issued += 1
        for y in fill:
            A(y)
        if self.fst:
            A('s_nop 7', f'v_mov_b32 {vr(T0 + 4)}, {vr(D)}')
            self.stamp(2)
        self.flag3(2)
        gt, up = T0 + 4, T0 + 5
        A(f'v_mov_b32 {vr(gt)}, {vr(D)}', f'v_mov_b32 {vr(up)}, {vr(D + 1)}')
        A(f'v_mov_b32_dpp {vr(gt)}, {vr(D + 1)} ' + dpp('row_shr:8', bank=0xc), f'v_mov_b32_dpp {vr(up)}, {vr(D)} ' + dpp('row_shl:8', bank=0x3))
        if self.lnf:
            mu, ri = tmp + 6, tmp + 7
            cg, cu = T0 + 6, T0 + 7
            A(f'v_mov_b32 {vr(cg)}, {vr(D + 2)}', f'v_mov_b32 {vr(cu)}, {vr(D + 2)}')
            A(f'v_mov_b32_dpp {vr(cg)}, {vr(D + 2)} ' + dpp('row_shr:8', bank=0xc), f'v_mov_b32_dpp {vr(cu)}, {vr(D + 2)} ' + dpp('row_shl:8', bank=0x3))
            A(f'v_fma_f32 {vr(gt)}, -{vr(mu)}, {vr(cg)}, {vr(gt)}', f'v_fma_f32 {vr(up)}, -{vr(mu)}, {vr(cu)}, {vr(up)}')
            A(f'v_mul_f32 {vr(gt)}, {vr(gt)}, {vr(ri)}', f'v_mul_f32 {vr(up)}, {vr(up)}, {vr(ri)}')
        A(f'v_cvt_pk_bf16_f32 {vr(up)}, {vr(gt)}, {vr(up)}', f'v_lshlrev_b32 {vr(gt)}, 16, {vr(up)}', f'v_and_b32 {vr(up)}, 0xffff0000, {vr(up)}')
        e = T0 + 6
        A(f'v_mul_f32 {vr(e)}, {sL2e}, {vr(gt)}', f'v_exp_f32 {vr(e)}, -{vr(e)}', f'v_add_f32 {vr(e)}, 1.0, {vr(e)}', f'v_rcp_f32 {vr(e)}, {vr(e)}')
        A(f'v_mul_f32 {vr(e)}, {vr(gt)}, {vr(e)}', f'v_cvt_pk_bf16_f32 {vr(e)}, {vr(e)}, {vr(e)}', f'v_lshlrev_b32 {vr(e)}, 16, {vr(e)}')
        A(f'v_mul_f32 {vr(e)}, {vr(e)}, {vr(up)}', f'v_cvt_pk_bf16_f32 {vr(e)}, {vr(e)}, {vr(e)}')
        if self.fst:
            self.stamp(3)
        A('s_mov_b64 exec, 0xffff', f'ds_write_b16 {vr(RA + 18)}, {vr(e)}', 's_mov_b64 exec, -1', 's_waitcnt lgkmcnt(0)', 's_barrier')
        self.stamp(8)
        self.flag3(3)
        B = T0 + 8
        if self.pk:
            D2 = T0 + 48
            for tau in range(9):
                A(f'ds_read_b128 {vr(B + 4 * tau, 4)}, {vr(HA + 24 + tau % 8)}')
            order = [0, 1, 2, 3, 4, 5, 6, 7, 8]
            for tau in order:
                A(f's_waitcnt lgkmcnt({8 - tau})')
                d = D2 + 4 if tau == 8 else D2
                A(f'v_mfma_f32_16x16x32_bf16 {vr(d, 4)}, {ar(200 + 4 * tau, 4)}, {vr(B + 4 * tau, 4)}, ' + ('0' if tau in (0, 8) else vr(d, 4)))
            A(f's_mov_b32 s60, {18432 * 8}', 's_nop 5')
            A(f'buffer_store_dwordx4 {vr(D2, 4)}, {vr(HA + 32)}, {WS_SRD}, 0 offen sc1')
            A('s_mov_b32 exec_lo, 0x30003', 's_mov_b32 exec_hi, 0x30003')
            A(f'buffer_store_dwordx4 {vr(D2 + 4, 4)}, {vr(RA + 20)}, {WS_SRD}, s60 offen sc1')
        else:
            A(f'ds_read_b128 {vr(B, 4)}, {vr(RA + 19)}', 's_waitcnt lgkmcnt(0)')
            D2 = T0 + 12
            for tau in range(9):
                A(f'v_mfma_f32_16x16x32_bf16 {vr(D2 + 4 * tau, 4)}, {ar(200 + 4 * tau, 4)}, {vr(B, 4)}, 0')
            A('s_mov_b32 exec_lo, 0x30003', 's_mov_b32 exec_hi, 0x30003')
            for tau in range(9):
                A(f's_mov_b32 s60, {18432 * tau}', f'buffer_store_dwordx4 {vr(D2 + 4 * tau, 4)}, {vr(RA + 20)}, {WS_SRD}, s60 offen sc1')
        self.stamp(9)

    def fin(self):
        A = self.A
        A.label('L_fin')
        if self.diag:
            A('s_mov_b64 exec, 1', 's_getreg_b32 s60, hwreg(HW_REG_XCC_ID)', 's_and_b32 s60, s60, 15', f's_lshl_b32 s61, {sRole}, 4', 's_or_b32 s60, s60, s61')
            A('s_lshl_b32 s61, s2, 2', f's_add_u32 s61, s61, {sW}', 's_lshl_b32 s61, s61, 6', f's_add_u32 s61, s61, {STAMPS}', 'v_mov_b32 v1, s61')
            A('s_waitcnt vmcnt(0)', 's_memrealtime s[100:101]', 's_waitcnt lgkmcnt(0)', 's_mov_b32 s90, s100')
            for k in range(11):
                A(f'v_mov_b32 v2, s{80 + k}', f'global_store_dword v1, v2, s[12:13] offset:{4 * k}')
            A('v_mov_b32 v2, s60', 'global_store_dword v1, v2, s[12:13] offset:60')
            if self.diag > 1:
                A(f's_or_b32 s61, s2, {sW}', 's_cmp_eq_u32 s61, 0', 's_cbranch_scc0 L_end')
                if self.pad:
                    A.label('L_pad')
                    A('s_memrealtime s[62:63]', 's_waitcnt lgkmcnt(0)', 's_sub_u32 s62, s62, s80', f's_cmp_lt_u32 s62, {self.pad * 100}', 's_cbranch_scc1 L_pad')
                A('s_load_dwordx2 s[62:63], s[0:1], 80', 'v_mov_b32 v1, 0', 's_waitcnt lgkmcnt(0)')
                for k in range(11):
                    A(f's_sub_u32 s61, s{80 + k}, s80', 'v_mov_b32 v2, s61', f'global_store_dword v1, v2, s[62:63] offset:{4 * k}')
        A.label('L_end')
        A('s_endpgm')

    def build(self):
        A = self.A
        if self.diag:
            for k in range(80, 91):
                A(f's_mov_b32 s{k}, 0')
        self.head()
        self.stream()
        A.label('L_tail')
        self.stamp(5)
        A(f's_cmp_eq_u32 {sRole}, 1', 's_cbranch_scc1 L_ffn', f's_cmp_eq_u32 {sRole}, 0', 's_cbranch_scc0 L_fin')
        self.role_t2()
        A.label('L_ffn')
        self.role_ffn()
        self.fin()
        self.helper()
        self.slow_paths()
        A.label('L_codeend')
        return A.finish()


HEADER = open(os.path.join(os.path.dirname(os.path.abspath(__file__)), 'header.txt')).read()


def make(**kw):
    g = Gen(**kw)
    body = g.build()
    return f"""{HEADER}; @launch grid=(256,1,1) block=(256,1,1) lds={LDS_BYTES}
.amdgcn_target "amdgcn-amd-amdhsa--gfx950"
.text
.globl {KNAME}
.p2align 8
.type {KNAME},@function
{KNAME}:
{body}
.section .rodata,"a"
.p2align 6
.amdhsa_kernel {KNAME}
  .amdhsa_next_free_vgpr 512
  .amdhsa_next_free_sgpr 102
  .amdhsa_accum_offset 256
  .amdhsa_group_segment_fixed_size 0
  .amdhsa_kernarg_size 96
  .amdhsa_user_sgpr_count 2
  .amdhsa_user_sgpr_kernarg_segment_ptr 1
  .amdhsa_system_sgpr_workgroup_id_x 1
  .amdhsa_float_denorm_mode_32 3
.end_amdhsa_kernel
"""


if __name__ == '__main__':
    out = sys.argv[1]
    kw = {}
    for a in sys.argv[2:]:
        k, v = a.split('=')
        kw[k] = int(v) if v.lstrip('-').isdigit() else v.replace('+', ' ')
    text = make(**kw)
    open(out, 'w').write(text)
```
